```python
import torch

def _softmax(x, axis=-1):
    return torch.softmax(x, dim=axis)

def _gelu(x):
    return torch.nn.functional.gelu(x, approximate='tanh')

def _silu(x):
    return torch.nn.functional.silu(x)

def _sigmoid(x):
    return torch.sigmoid(x)

def _layernorm(x, axis=-1, eps=1e-05):
    m = x.mean(dim=axis, keepdim=True)
    v = x.var(dim=axis, keepdim=True, unbiased=False)
    return (x - m) / torch.sqrt(v + eps)

def _scatter_add(tgt, idx, src, axis=0):
    return tgt.clone().index_add_(axis, idx, src)

def _segment_sum(src, seg, n):
    out = torch.zeros((n,) + src.shape[1:], dtype=src.dtype)
    return out.index_add_(0, seg, src)

def _pad(x, pw):
    flat = tuple((v for pair in reversed(pw) for v in pair))
    return torch.nn.functional.pad(x, flat)
kernel_name = 'sequential_preLN__memory_aug_recurrent_mem_tr__dense_activation_gelu__prompt'

def setup_inputs():

    _w = lambda a: (lambda t: t.to(torch.bfloat16) if t.is_floating_point() else t)(torch.as_tensor(a))

    def _A_setup():
        B, S, Dm = (1, 2048, 576)
        H, Dh = (32, 128)
        M, seg = (8, 32)
        seg = min(seg, S)
        S = S // seg * seg
        return {'x': _w((lambda *s: torch.randn(*s, dtype=torch.bfloat16) * 0.05)(B, S, Dm)), 'mem0': _w((lambda *s: torch.randn(*s, dtype=torch.bfloat16) * 0.2)(B, M, Dm)), 'Wq': _w((lambda *s: torch.randn(*s, dtype=torch.bfloat16) * 1.6)(Dm, H, Dh) * Dm ** (-0.5)), 'Wk': _w((lambda *s: torch.randn(*s, dtype=torch.bfloat16) * 1.6)(Dm, H, Dh) * Dm ** (-0.5)), 'Wv': _w((lambda *s: torch.randn(*s, dtype=torch.bfloat16) * 0.2)(Dm, H, Dh) * Dm ** (-0.5)), 'Wo': _w((lambda *s: torch.randn(*s, dtype=torch.bfloat16) * 0.2)(H, Dh, Dm) * (H * Dh) ** (-0.5)), 'seg_len': seg}
    _A_in = _A_setup()

    def _B_setup():
        B, S, D, F = (1, 2048, 576, 4608)
        return {'x': _w((lambda *s: torch.randn(*s, dtype=torch.bfloat16) * 0.05)(B, S, D)), 'w1': _w((lambda *s: torch.randn(*s, dtype=torch.bfloat16) * 0.4)(D, F) * D ** (-0.5)), 'b1': _w((lambda *s: torch.randn(*s, dtype=torch.bfloat16) * 12.8)(F) * 0.01), 'w2': _w((lambda *s: torch.randn(*s, dtype=torch.bfloat16) * 0.2)(F, D) * F ** (-0.5)), 'b2': _w((lambda *s: torch.randn(*s, dtype=torch.bfloat16) * 3.2)(D) * 0.01)}
    _B_in = _B_setup()
    return {'A_x': _A_in['x'], 'A_mem0': _A_in['mem0'], 'A_Wq': _A_in['Wq'], 'A_Wk': _A_in['Wk'], 'A_Wv': _A_in['Wv'], 'A_Wo': _A_in['Wo'], 'A_seg_len': _A_in['seg_len'], 'B_x': _B_in['x'], 'B_w1': _B_in['w1'], 'B_b1': _B_in['b1'], 'B_w2': _B_in['w2'], 'B_b2': _B_in['b2']}

def reference(A_x, A_mem0, A_Wq, A_Wk, A_Wv, A_Wo, A_seg_len, B_x, B_w1, B_b1, B_w2, B_b2):

    def _A_ref(x, mem0, Wq, Wk, Wv, Wo, seg_len):
        B, S, Dm = x.shape
        H, Dh = (Wq.shape[1], Wq.shape[2])
        M = mem0.shape[1]
        scale = Dh ** (-0.5)
        n_seg = S // seg_len
        L = M + seg_len
        idx = torch.arange(L)
        mask = (idx[:, None] < M) | (idx[:, None] >= idx[None, :])
        mem = mem0
        outs = []
        for s in range(n_seg):
            xs = x[:, s * seg_len:(s + 1) * seg_len, :].clone()
            h = torch.concatenate([mem, xs], axis=1)
            q = torch.einsum('btd,dhe->bhte', h, Wq)
            k = torch.einsum('btd,dhe->bhte', h, Wk)
            v = torch.einsum('btd,dhe->bhte', h, Wv)
            scores = torch.einsum('bhqe,bhke->bhqk', q, k) * scale
            scores = torch.where(mask[None, None], scores, -1000000000.0)
            p = _softmax(scores, axis=-1)
            o = torch.einsum('bhqk,bhke->bhqe', p, v)
            o = torch.einsum('bhte,hed->btd', o, Wo)
            mem = o[:, :M, :].clone()
            outs.append(o[:, M:, :])
        return torch.concatenate(outs, axis=1)

    def _B_ref(x, w1, b1, w2, b2):
        h = torch.einsum('bsd,df->bsf', x, w1) + b1
        h = _gelu(h)
        return torch.einsum('bsf,fd->bsd', h, w2) + b2
    x = A_x
    h = x + _A_ref(_layernorm(x, axis=-1), A_mem0, A_Wq, A_Wk, A_Wv, A_Wo, A_seg_len)
    h2 = h + _B_ref(_layernorm(h, axis=-1), B_w1, B_b1, B_w2, B_b2)
    return h2
```

```python
import re

class Reg:
    __slots__ = ("k", "i", "n")
    def __init__(self, k, i, n=1):
        self.k, self.i, self.n = k, i, n
    def __str__(self):
        if self.k in ("vcc", "exec", "m0", "scc"):
            return self.k
        if self.n == 1:
            return f"{self.k}{self.i}"
        return f"{self.k}[{self.i}:{self.i + self.n - 1}]"
    __repr__ = __str__
    def __getitem__(self, x):
        if isinstance(x, slice):
            st = x.start or 0
            en = self.n if x.stop is None else x.stop
            assert 0 <= st < en <= self.n, (self, x)
            return Reg(self.k, self.i + st, en - st)
        assert 0 <= x < self.n, (self, x)
        return Reg(self.k, self.i + x, 1)
    def units(self):
        if self.k == "vcc":
            return [("s", 106), ("s", 107)]
        if self.k == "exec":
            return [("s", 126), ("s", 127)]
        if self.k == "m0":
            return [("s", 124)]
        if self.k == "scc":
            return [("scc", 0)]
        return [(self.k, self.i + j) for j in range(self.n)]

def V(i, n=1):
    assert 0 <= i and i + n <= 256, (i, n)
    if n >= 2: assert i % 2 == 0, ("vgpr tuple alignment", i, n)
    return Reg("v", i, n)
def A(i, n=1):
    assert 0 <= i and i + n <= 256, (i, n)
    if n >= 2: assert i % 2 == 0
    return Reg("a", i, n)
def S(i, n=1):
    assert 0 <= i and i + n <= 102, (i, n)
    if n == 2: assert i % 2 == 0
    if n >= 4: assert i % 4 == 0
    return Reg("s", i, n)
VCC = Reg("vcc", 0, 2)
EXEC = Reg("exec", 0, 2)
M0 = Reg("m0", 0, 1)

TRANS = ("v_exp_f32", "v_log_f32", "v_rcp_f32", "v_rsq_f32", "v_sqrt_f32", "v_sin_f32", "v_cos_f32")

class Ins:
    __slots__ = ("op", "args", "mods", "defs", "uses", "cls", "passes", "srcc", "text", "ab")
    def __init__(self, op, args, mods):
        self.op, self.args, self.mods = op, args, mods
        self.passes = 0
        self.srcc = []
        self.ab = []
        regs = [a for a in args]
        def U(x):
            return x.units() if hasattr(x, 'units') else []
        defs, uses = [], []
        o = op
        if o.startswith("v_smfmac") or o.startswith("v_mfma"):
            self.cls = "mfma"
            self.passes = 8 if "32x32" in o else 4
            defs = U(args[0])
            if o.startswith("v_smfmac"):
                self.srcc = U(args[0]); self.ab = U(args[1]) + U(args[2]) + U(args[3])
            else:
                self.srcc = U(args[3]); self.ab = U(args[1]) + U(args[2])
            uses = self.srcc + self.ab
        elif o.startswith("v_"):
            self.cls = "valu"
            if o.startswith("v_cmp"):
                defs = U(args[0]); uses = sum((U(x) for x in args[1:]), [])
            elif "permlane" in o and "swap" in o:
                defs = U(args[0]) + U(args[1]); uses = list(defs)
            elif o.startswith(("v_fmac", "v_dot2c", "v_pk_fmac")) or o.endswith("_dpp") or o.startswith("v_writelane"):
                defs = U(args[0]); uses = sum((U(x) for x in args), [])
            elif o.startswith(("v_add_co", "v_sub_co", "v_addc_co", "v_subb_co")):
                defs = U(args[0]) + U(args[1]); uses = sum((U(x) for x in args[2:]), [])
            else:
                defs = U(args[0]); uses = sum((U(x) for x in args[1:]), [])
        elif o.startswith("ds_"):
            self.cls = "ds"
            if o.startswith(("ds_read", "ds_bpermute", "ds_permute", "ds_swizzle")):
                defs = U(args[0]); uses = sum((U(x) for x in args[1:]), [])
            else:
                uses = sum((U(x) for x in args), [])
        elif o.startswith(("buffer_", "global_")):
            self.cls = "vmem"
            islds = ("lds" in mods.split()) or ("_lds_" in o)
            if o in ("buffer_inv", "buffer_wbl2"):
                pass
            elif "load" in o and not islds:
                defs = U(args[0]); uses = sum((U(x) for x in args[1:]), [])
            elif "atomic" in o and "sc0" in mods.split():
                defs = U(args[0]); uses = sum((U(x) for x in args), [])
            else:
                uses = sum((U(x) for x in args), [])
                if islds: uses = uses + M0.units()
        elif o.startswith("s_"):
            self.cls = "salu"
            if o.startswith(("s_load", "s_memtime", "s_memrealtime")):
                self.cls = "smem"
                defs = U(args[0]); uses = sum((U(x) for x in args[1:]), [])
            elif o.startswith(("s_cmp", "s_cbranch", "s_branch", "s_waitcnt", "s_barrier", "s_nop", "s_sleep",
                               "s_setprio", "s_endpgm", "s_bitcmp")):
                uses = sum((U(x) for x in args), [])
            elif "saveexec" in o:
                defs = U(args[0]) + EXEC.units(); uses = sum((U(x) for x in args[1:]), []) + EXEC.units()
            else:
                defs = U(args[0]); uses = sum((U(x) for x in args[1:]), [])
        else:
            raise ValueError(op)
        self.defs, self.uses = defs, uses
        a = ", ".join(str(x) for x in args)
        self.text = (op + " " + a + (" " + mods if mods else "")).rstrip()

class Label:
    def __init__(self, name): self.name = name

class Raw:
    def __init__(self, text): self.text = text

class K:
    def __init__(self, name="k"):
        self.items = []
        self.name = name
        self.nlab = 0
    def op(self, name, *args, mods=""):
        ins = Ins(name, list(args), mods)
        self.items.append(ins)
        return ins
    def __getattr__(self, name):
        if name.startswith(("v_", "s_", "ds_", "buffer_", "global_")):
            return lambda *args, mods="": self.op(name, *args, mods=mods)
        raise AttributeError(name)
    def label(self, name=None):
        if name is None:
            name = self.newlabel()
        self.items.append(Label(name))
        return name
    def newlabel(self, tag="L"):
        self.nlab += 1
        return f"{tag}_{self.name}_{self.nlab}"
    def comment(self, t):
        self.items.append(Raw("; " + t))
    def wait(self, vm=None, lgkm=None):
        m = []
        if vm is not None: m.append(f"vmcnt({vm})")
        if lgkm is not None: m.append(f"lgkmcnt({lgkm})")
        ins = Ins("s_waitcnt", [], " ".join(m))
        ins.text = "s_waitcnt " + " ".join(m)
        ins.mods = (vm, lgkm)
        self.items.append(ins)
    def carry(self, *regs):
        self.items.append(("carry", [u for r in regs for u in r.units()]))
    def extend(self, lst):
        self.items.extend(lst)

    def finish(self):
        items = self._waits(self.items)
        items = self._hazards(items)
        out = []
        for it in items:
            if isinstance(it, Label): out.append(it.name + ":")
            elif isinstance(it, Raw): out.append("    " + it.text)
            elif isinstance(it, tuple): pass
            else: out.append("    " + it.text)
        return "\n".join(out) + "\n"

    def _waits(self, items):
        out = []
        vmq, lgq = [], []
        carried = set()
        def mk(vm, lg):
            m = []
            if vm is not None: m.append(f"vmcnt({vm})")
            if lg is not None: m.append(f"lgkmcnt({lg})")
            ins = Ins("s_waitcnt", [], "")
            ins.text = "s_waitcnt " + " ".join(m)
            ins.mods = (vm, lg)
            return ins
        def boundary(where):
            nonlocal vmq, lgq, carried
            for q in (vmq, lgq):
                for e in q:
                    d = {u for u in e[1] if u[0] != "p"}
                    if d and not d <= carried:
                        raise RuntimeError(f"pending load into {sorted(d)} at boundary {where} in {self.name}")
            vmq, lgq, carried = [], [], set()
        for it in items:
            if isinstance(it, tuple):
                carried |= set(it[1]); continue
            if isinstance(it, Label):
                boundary(it.name); out.append(it); continue
            if isinstance(it, Raw):
                out.append(it); continue
            if it.op == "s_waitcnt":
                vm, lg = it.mods
                if vm is not None: vmq = vmq[len(vmq) - vm:] if vm < len(vmq) else vmq
                if vm == 0: vmq = []
                if lg is not None:
                    if lg == 0: lgq = []
                    else:
                        assert not any(e[0] == "smem" for e in lgq), "counted lgkm wait with smem pending"
                        lgq = lgq[len(lgq) - lg:] if lg < len(lgq) else lgq
                out.append(it); continue
            touched = set(it.defs) | set(it.uses)
            needvm = None
            for idx, e in enumerate(vmq):
                if e[1] & touched: needvm = len(vmq) - 1 - idx
            needlg = None
            for idx, e in enumerate(lgq):
                if e[1] & touched:
                    needlg = len(lgq) - 1 - idx
            if needlg is not None and any(e[0] == "smem" for e in lgq):
                needlg = 0
            if needvm is not None or needlg is not None:
                if needvm is not None: needvm = min(needvm, 63)
                if needlg is not None: needlg = min(needlg, 15)
                out.append(mk(needvm, needlg))
                if needvm is not None: vmq = vmq[len(vmq) - needvm:] if needvm else []
                if needlg is not None: lgq = lgq[len(lgq) - needlg:] if needlg else []
            out.append(it)
            if it.cls == "vmem" and it.op not in ("buffer_inv", "buffer_wbl2"):
                vmq.append(("vm", set(it.defs)))
            elif it.cls == "ds":
                lgq.append(("ds", set(it.defs)))
            elif it.cls == "smem":
                lgq.append(("smem", set(it.defs)))
            if it.op.startswith(("s_cbranch", "s_branch", "s_endpgm")):
                if it.op != "s_endpgm":
                    keep = carried
                    for q in (vmq, lgq):
                        for e in q:
                            d = {u for u in e[1] if u[0] != "p"}
                            if d and not d <= keep:
                                raise RuntimeError(f"pending load into {sorted(d)} at branch {it.text} in {self.name}")
                    if it.op == "s_branch":
                        vmq, lgq, carried = [], [], set()
        return out

    def _hazards(self, items):
        out = []
        pos = 0
        tp = 0
        lastw = {}
        lastc = {}
        laststore = {}
        sgw = {}
        m0w = -100
        mfree = -100
        def pad(n):
            nonlocal pos, tp
            while n > 0:
                c = min(n, 16)
                out.append(Ins("s_nop", [c - 1], "")); pos += c; tp += c; n -= c
        def flush():
            need = 0
            for u, (p, kind, passes, _) in lastw.items():
                if kind == "mfma": need = max(need, p + (12 if passes == 8 else 8) + 1 - tp)
                else: need = max(need, p + 2 + 1 - pos)
            for u, (p, passes) in lastc.items():
                need = max(need, p + (7 if passes == 8 else 3) + 1 - tp)
            for u, p in sgw.items(): need = max(need, p + (2 if u[1] in (106, 107) else 5) + 1 - pos)
            for u, p in laststore.items(): need = max(need, p + 2 + 1 - pos)
            need = max(need, m0w + 1 + 1 - pos)
            return need
        for it in items:
            if isinstance(it, tuple) or isinstance(it, Raw):
                out.append(it); continue
            if isinstance(it, Label):
                pad(flush()); out.append(it); continue
            need = 0; needt = 0
            def req(p, d):
                nonlocal need
                need = max(need, p + d + 1)
            def reqt(p, d):
                nonlocal needt
                needt = max(needt, p + d + 1)
            if it.op.startswith(("s_cbranch", "s_branch")):
                pad(flush() - 1)
            rdefs = tuple(u for u in it.defs if u[0] != "p")
            if it.cls == "mfma":
                for u in it.ab:
                    if u in lastw:
                        p, kind, passes, _ = lastw[u]
                        if kind == "mfma": reqt(p, 12 if passes == 8 else 8)
                        else: req(p, 2)
                for u in it.srcc:
                    if u in lastw:
                        p, kind, passes, sig = lastw[u]
                        if kind == "mfma":
                            if sig != (tuple(it.srcc), it.passes): reqt(p, 10 if passes == 8 else 6)
                        else: req(p, 2)
                for u in rdefs:
                    if u in lastw:
                        p, kind, passes, sig = lastw[u]
                        if kind == "mfma" and sig != (rdefs, it.passes): reqt(p, 10 if passes == 8 else 6)
                for u in EXEC.units():
                    if u in sgw: req(sgw[u], 4)
            elif it.cls == "valu":
                isperm = "permlane" in it.op
                isdpp = it.op.endswith("_dpp")
                isrl = it.op.startswith(("v_readlane", "v_readfirstlane"))
                for u in it.uses:
                    if u in lastw:
                        p, kind, passes, _ = lastw[u]
                        if kind == "mfma": reqt(p, 12 if passes == 8 else 8)
                        else:
                            if isperm or isdpp: req(p, 2)
                            if isrl or kind == "trans": req(p, 1)
                    if u in sgw: req(sgw[u], 4 if isrl else 2)
                for u in it.defs:
                    if u in lastw:
                        p, kind, passes, _ = lastw[u]
                        if kind == "mfma": reqt(p, 12 if passes == 8 else 8)
                    if u in lastc:
                        p, passes = lastc[u]
                        reqt(p, 7 if passes == 8 else 3)
                    if u in laststore: req(laststore[u], 2)
            elif it.cls in ("ds", "vmem"):
                for u in list(it.uses) + list(it.defs):
                    if u in lastw:
                        p, kind, passes, _ = lastw[u]
                        if kind == "mfma": reqt(p, 12 if passes == 8 else 8)
                    if u in sgw and it.cls == "vmem": req(sgw[u], 5)
                for u in it.defs:
                    if u in laststore: req(laststore[u], 1)
                if ("s", 124) in it.uses: req(m0w, 1)
            elif it.cls in ("salu", "smem"):
                for u in it.uses:
                    if u in sgw: req(sgw[u], 1)
            if it.cls == "mfma":
                n1 = need - pos
                n2 = needt - max(tp, mfree)
                if n2 > 0: n2 = needt - tp
                pad(max(n1, n2))
                tp = max(tp, mfree)
            else:
                pad(max(need - pos, needt - tp))
            out.append(it)
            if it.cls == "mfma":
                mfree = tp + (it.passes if "x16_bf16" not in it.op or "32x32" in it.op else 2)
                for u in rdefs: lastw[u] = (tp, "mfma", it.passes, (rdefs, it.passes))
                for u in it.srcc: lastc[u] = (tp, it.passes)
            elif it.cls == "valu":
                kind = "trans" if it.op in TRANS else "valu"
                for u in rdefs:
                    if u[0] == "s": sgw[u] = pos
                    else: lastw[u] = (pos, kind, 0, None)
            elif it.cls in ("ds", "vmem"):
                for u in rdefs: lastw.pop(u, None)
                if it.cls == "vmem" and ("store" in it.op) and ("x4" in it.op or "x3" in it.op):
                    for a in it.args:
                        if isinstance(a, Reg) and a.k in "va" and a.n >= 3:
                            for u in a.units(): laststore[u] = pos
            elif it.cls == "salu":
                if ("s", 124) in it.defs: m0w = pos
                for u in it.defs: sgw.pop(u, None)
            inc = it.args[0] + 1 if it.op == "s_nop" else 1
            pos += inc; tp += inc
        return out

def interleave(main, fill, per=2, start=0):
    out = []
    fi = 0
    for i, m in enumerate(main):
        out.append(m)
        if i >= start:
            for _ in range(per):
                if fi < len(fill):
                    out.append(fill[fi]); fi += 1
    out.extend(fill[fi:])
    return out

def kernel_text(name, body, vgpr=512, accum=256, sgpr=102):
    t = f".globl {name}\n.p2align 8\n.type {name},@function\n{name}:\n" + body
    d = f""".amdhsa_kernel {name}
  .amdhsa_next_free_vgpr {vgpr}
  .amdhsa_next_free_sgpr {sgpr}
  .amdhsa_accum_offset {accum}
  .amdhsa_group_segment_fixed_size 0
  .amdhsa_kernarg_size 120
  .amdhsa_user_sgpr_count 2
  .amdhsa_user_sgpr_kernarg_segment_ptr 1
  .amdhsa_system_sgpr_workgroup_id_x 1
.end_amdhsa_kernel
"""
    return t, d


class Neg:
    def __init__(self, r): self.r = r
    def __str__(self): return "-" + str(self.r)
    def units(self): return self.r.units()

def dep(ins, defs=(), uses=()):
    ins.defs = list(ins.defs) + [("p", d) for d in defs]
    ins.uses = list(ins.uses) + [("p", u) for u in uses]
    return ins

SCC_W = ("s_add", "s_sub", "s_and", "s_or", "s_xor", "s_lshl", "s_lshr", "s_cmp", "s_min", "s_max", "s_ashr", "s_bfe", "s_andn2", "s_not")
def _du(ins):
    d, u = set(ins.defs), set(ins.uses)
    if ins.cls == "salu":
        if ins.op.startswith(SCC_W): d.add(("scc", 0))
        if ins.op.startswith(("s_cselect", "s_addc", "s_subb", "s_cbranch_scc")): u.add(("scc", 0))
    if ins.cls in ("valu", "mfma", "ds", "vmem"):
        u |= set(EXEC.units())
    return d, u

def schedule(instrs, lds_share=4, vm_lat=320, verbose=False, t_ready=None):
    n = len(instrs)
    DU = [_du(i) for i in instrs]
    preds = [dict() for _ in range(n)]
    lastdef, lastuses = {}, {}
    lastvm = None
    lastbar = None
    def isheavy(i): return i.op in TRANS or "permlane" in i.op
    def lat(a, b, kind):
        A_, B_ = instrs[a], instrs[b]
        if kind == "war":
            if A_.cls == "mfma" and B_.cls == "valu": return 16 if A_.passes == 4 else 32
            return 4
        if A_.cls == "mfma":
            P = 16 if A_.passes == 4 else 32
            if B_.cls == "mfma" and tuple(B_.srcc) == tuple(u for u in A_.defs if u[0] != 'p'): return P
            return P + 20
        if A_.cls == "valu":
            base = 8 if isheavy(A_) else 4
            if B_.cls == "mfma" or "permlane" in B_.op or B_.op.endswith("_dpp"): return base + 8
            if B_.cls == "vmem" and any(u[0] == "s" for u in A_.defs): return 24
            return base + (4 if A_.op in TRANS else 0)
        if A_.cls == "ds": return -1
        if A_.cls == "vmem": return vm_lat if kind == "raw" else 4
        if A_.op == "s_barrier": return 24
        return 4
    for i, ins in enumerate(instrs):
        d, u = DU[i]
        for x in u:
            if x in lastdef:
                if x[0] == "p" and str(x[1]).startswith("o:"): preds[i].setdefault(lastdef[x], "ord")
                else: preds[i][lastdef[x]] = "raw"
        for x in d:
            if x in lastdef: preds[i].setdefault(lastdef[x], "waw")
            for j in lastuses.get(x, ()):
                if j != i: preds[i].setdefault(j, "war")
        if ins.cls == "vmem":
            if lastvm is not None: preds[i].setdefault(lastvm, "ord")
            lastvm = i
        if ins.op == "s_barrier":
            if lastbar is not None: preds[i].setdefault(lastbar, "ord")
            lastbar = i
        for x in u: lastuses.setdefault(x, []).append(i)
        for x in d:
            lastdef[x] = i; lastuses[x] = []
    succs = [[] for _ in range(n)]
    for i in range(n):
        for j in preds[i]: succs[j].append(i)
    prio = [0] * n
    for i in range(n - 1, -1, -1):
        best = 0
        for s in succs[i]:
            kind = preds[s][i]
            l = lat(i, s, kind) if kind != "ord" else 4
            if l < 0: l = 110 if kind == "raw" else 4
            best = max(best, l + prio[s])
        prio[i] = best + (16 if instrs[i].cls == "mfma" else 4)
    done = [None] * n
    dsdone = [0] * n
    left = [len(p) for p in preds]
    ready = [i for i in range(n) if left[i] == 0]
    t = 0; valu_free = 0; pipe_free = 0; lds_free = 0
    covered = {"ds": -1, "vmem": -1}
    last_issue = -4
    order = []
    def earliest(i):
        e = 0
        for j, kind in preds[i].items():
            if kind == "ord": l = 4
            else:
                l = lat(j, i, kind)
                if l < 0:
                    if kind == "raw": e = max(e, dsdone[j]); continue
                    l = 4
            e = max(e, done[j] + l)
        ins = instrs[i]
        if any(kind == "raw" and instrs[j].cls in ("ds", "vmem") and done[j] > covered[instrs[j].cls] for j, kind in preds[i].items()):
            e = max(e, last_issue + 8)
        if ins.cls == "valu": e = max(e, valu_free)
        if ins.cls == "mfma": e = max(e, valu_free, pipe_free)
        return e
    while ready:
        cand = [(earliest(i), i) for i in ready]
        now = [i for e, i in cand if e <= t]
        if not now:
            t = min(e for e, i in cand); continue
        i = max(now, key=lambda x: (prio[x], -x))
        ins = instrs[i]
        if ins.cls == "valu":
            cost = 8 if isheavy(ins) else 4
            block = [j for e, j in cand if t < e < t + cost and instrs[j].cls in ("mfma", "valu") and prio[j] > prio[i] + 24]
            if block:
                alt = [x for x in now if instrs[x].cls not in ("valu", "mfma")]
                if alt: i = max(alt, key=lambda x: (prio[x], -x)); ins = instrs[i]
                else:
                    t = min(e for e, j in cand if j in block); continue
        done[i] = t
        last_issue = t
        for j, kind in preds[i].items():
            if kind == "raw" and instrs[j].cls in ("ds", "vmem"): covered[instrs[j].cls] = max(covered[instrs[j].cls], done[j])
        order.append(i)
        ready.remove(i)
        if ins.cls == "valu": valu_free = t + (8 if isheavy(ins) else 4)
        elif ins.cls == "mfma":
            valu_free = t + (12 if "smfmac" in ins.op else 8)
            pipe_free = t + (16 if ins.passes == 4 else 32)
        elif ins.cls == "ds":
            w = 4 if ("b128" in ins.op) else 2
            if "write" in ins.op: w = {"ds_write_b128": 10, "ds_write_b64": 6}.get(ins.op, 4)
            lds_free = max(lds_free, t + 8) + w * lds_share
            dsdone[i] = lds_free + (20 if 'write' in ins.op else 50)
        for s in succs[i]:
            left[s] -= 1
            if left[s] == 0: ready.append(s)
        t += 20 if ins.cls == "vmem" else 4
        if ins.cls == "vmem": last_issue = t - 4
    assert len(order) == n
    if verbose: print("schedule: est cycles", t, [done[i] for i in order if instrs[i].op == "s_barrier"])
    if verbose == 2:
        for i in order: print(done[i], instrs[i].text)
    return [instrs[i] for i in order]
```

```python
XN    = 0x0000000
QS    = 0x0400000
KS    = 0x1400000
VT    = 0x2400000
OS    = 0x3400000
KM    = 0xC000000
VM    = 0x4800000
P1    = 0x4C00000
HH    = 0x7000000
HN    = 0x7500000
GG    = 0x7800000
P2    = 0xD000000
PART  = 0xAE00000
PARTB = 327680
MEMB  = 0xAF00000
MEMS  = 0x2400
FLAGS = 0xAFC0000
WS_BYTES = 268435456
KA = dict(x=0, mem0=8, Wq=16, Wk=24, Wv=32, Wo=40, w1=64, b1=72, w2=80, b2=88, out=96, dbg=104, ws=112)
SOFTC = 0.08838834764831845 * 1.4426950408889634
```

```python
from asmlib import *
from layout import *
import struct, os
OPT = os.environ.get('TOPT', '')

def f32(x): return struct.unpack("<I", struct.pack("<f", x))[0]
I = lambda op, *a, mods="": Ins(op, list(a), mods)

L_MEMA, L_KX, L_QT, L_KT, L_OA, L_SCR, L_FR = 0, 9216, 17408, 19456, 21504, 23552, 24576
FRW = 34816
L_VXO = 32768

sWS, sW8, sDBG = S(4, 4), S(8, 4), S(12, 4)
sH, sW, sSTEP, sTO = S(16), S(17), S(18), S(19)
sT0, sT1, sT2, sT3 = S(20), S(21), S(22), S(23)
sHALF = S(24, 2)
sC = S(26, 2)
sHI32 = S(28, 2)
sONE = S(30, 2)
sGOWN, sG8 = S(32), S(33)
sPST = S(34)
sR = [S(35), S(36), S(37), S(38)]
sMST, sMPO = S(39), S(40)
sKXS, sVXS, sKMS, sVMS = S(41), S(42), S(43), S(44)
sRED = S(45)
sFRB = S(46)
sHW, sW2 = S(47), S(48)
sNEG = S(49)
sRBASE, sRSTR, sRSTR2 = S(50), S(51), S(71)
sKXM0, sVXM0 = S(52), S(53)
sFAST = S(54)
sMSB = S(55)
sPTR, sPTR2 = S(56, 2), S(58, 2)
sPWB = S(60)
sOAW = S(61)
sLOW8 = S(62, 2)
sTCH = S(64)
sW9 = S(65)
sHLF = S(100, 2) if False else S(98, 2)
sPAR = S(66)
sTAG, sMPP, sMPI, sTAGX = S(67), S(68), S(69), S(70)

vL16, vFR, vIDX, vQW, vQR, vG, vMW, vM8, vRL, vMS, vT, vT2 = [V(i) for i in range(12)]
def W(n, cnt=1): return V(12 + 4 * n, 4 * cnt)

JB1B = 10
NVM = 8
LDS_IMAGES = [('q', 0), ('q', 1), ('q', 2), ('q', 3), ('q', 4), ('k', 5), ('o', 0, 1), ('o', 2, 1)]
if 'imgB' in OPT: LDS_IMAGES = [('q', 0), ('k', 1), ('v', 2), ('v', 3), ('q', 5), ('o', 0, 1), ('o', 2, 1), ('o', 3, 0)]
ALL_IMAGES = [(m, j) for m in 'qkv' for j in range(9)] + [('o', P, kb) for P in range(4) for kb in range(2)] + [('o', 4, 0)]
REG_IMAGES = [im for im in ALL_IMAGES if im not in LDS_IMAGES]
FRAG = {}
_pool = [A(8 * i, 8) for i in range(32)] + [V(64 + 8 * i, 8) for i in range(24)]
for im in REG_IMAGES:
    for t in range(2): FRAG[(im, t)] = _pool.pop(0)
assert not _pool
for i, im in enumerate(LDS_IMAGES):
    for t in range(2): FRAG[(im, t)] = ('lds', i * 4096 + t * 2048)
JX = {0: 0, 1: 1, 3: 2, 4: 3, 5: 4, 6: 5, 7: 6, 8: 7}

def srd(k, dst, ptr, nbytes):
    k.s_mov_b32(dst[0], ptr[0])
    k.s_and_b32(dst[1], ptr[1], 0xffff)
    k.s_mov_b32(dst[2], nbytes)
    k.s_mov_b32(dst[3], 0x20000)

vWQ, vWO, vTRQ, vTRO, vTRQ8 = V(56), V(57), V(58), V(59), V(60)

def lane_consts(k):
    l, g, m, r4, c4, x, y = [V(20 + i) for i in range(7)]
    k.v_lshrrev_b32(x, 6, V(0))
    k.v_readfirstlane_b32(sW, x)
    k.v_and_b32(l, 63, V(0))
    k.v_lshrrev_b32(g, 4, l)
    k.v_and_b32(m, 15, l)
    k.v_lshrrev_b32(r4, 2, m)
    k.v_and_b32(c4, 3, m)
    k.v_lshlrev_b32(vL16, 4, l)
    k.s_mul_i32(sFRB, sW, FRW)
    k.s_add_u32(sFRB, sFRB, L_FR)
    k.v_add_u32(vFR, sFRB, vL16)
    k.v_and_b32(x, 8, l)
    k.v_cmp_ne_u32(sHALF, 0, x)
    k.v_cmp_eq_u32(sLOW8, 0, x)
    k.v_cmp_lt_u32(sHI32, 31, l)
    k.v_mov_b32(x, 0x4444)
    k.v_mov_b32(y, 0xEEEE)
    k.v_cndmask_b32(vIDX, x, y, sHALF)
    k.v_lshrrev_b32(x, 5, l)
    k.v_lshl_add_u32(x, x, 4, m)
    k.s_lshl_b32(sT0, sW, 5)
    k.v_add_u32(x, sT0, x)
    k.v_and_b32(y, 1, g)
    k.v_lshlrev_b32(y, 3, y)
    k.v_lshl_add_u32(vQW, x, 4, y)
    k.v_lshrrev_b32(x, 1, g)
    k.v_lshlrev_b32(x, 4, x)
    k.v_and_b32(y, 1, g)
    k.v_lshl_add_u32(x, y, 2, x)
    k.v_add_u32(x, x, r4)
    k.v_and_b32(y, 1, c4)
    k.v_lshlrev_b32(y, 3, y)
    k.v_lshl_add_u32(vQR, x, 4, y)
    k.v_and_b32(x, 7, l)
    k.v_lshlrev_b32(x, 4, x)
    k.v_lshl_add_u32(vG, g, 7, x)
    k.s_lshl_b32(sT1, sW, 11)
    k.v_add_u32(vMW, sT1, vG)
    k.s_and_b32(sT0, sW, 1)
    k.s_lshl_b32(sW9, sT0, 9)
    k.s_add_u32(sT0, sW9, 8192)
    k.v_add_u32(vM8, sT0, vG)
    k.v_lshrrev_b32(x, 2, l)
    k.v_and_b32(y, 3, l)
    k.v_lshlrev_b32(y, 4, y)
    k.v_lshl_add_u32(vWQ, x, 13, y)
    k.s_mov_b32(sT2, 1152)
    k.v_mul_lo_u32(x, x, sT2)
    k.v_add_u32(vWO, x, y)
    k.v_and_b32(x, 1, r4)
    k.v_lshl_add_u32(x, g, 2, x)
    k.v_lshlrev_b32(x, 6, x)
    k.v_lshrrev_b32(y, 1, r4)
    k.v_lshl_add_u32(y, y, 5, x)
    k.v_lshl_add_u32(y, c4, 3, y)
    k.v_add_u32(vTRQ, sFRB, y)
    k.s_lshl_b32(sT0, sW9, 2)
    k.v_xor_b32(y, sT0, y)
    k.v_add_u32(vTRQ8, sFRB, y)
    k.v_xor_b32(y, 2048, y)
    k.v_add_u32(V(61), sFRB, y)
    k.v_and_b32(x, 1, g)
    k.v_lshlrev_b32(x, 4, x)
    k.v_lshrrev_b32(y, 1, g)
    k.v_lshl_add_u32(x, y, 2, x)
    k.v_and_b32(y, 1, r4)
    k.v_add_u32(x, x, y)
    k.v_lshlrev_b32(x, 6, x)
    k.v_lshrrev_b32(y, 1, r4)
    k.v_lshl_add_u32(x, y, 5, x)
    k.v_lshl_add_u32(x, c4, 3, x)
    k.s_lshl_b32(sT0, sW9, 2)
    k.v_xor_b32(x, sT0, x)
    k.v_add_u32(vTRO, sFRB, x)
    k.v_xor_b32(x, 2048, x)
    k.v_add_u32(V(62), sFRB, x)
    k.s_lshl_b32(sW2, sW, 1)
    k.s_lshl_b32(sT0, sH, 8)
    k.s_lshl_b32(sT1, sW, 6)
    k.s_add_u32(sHW, sT0, sT1)
    k.s_mov_b32(sC[0], f32(SOFTC)); k.s_mov_b32(sC[1], f32(SOFTC))
    k.s_mov_b32(sONE[0], 0x3F803F80); k.s_mov_b32(sONE[1], 0x3F803F80)
    k.s_mov_b32(sNEG, 0xFFFFFFFE)
    k.s_mov_b32(sHLF[0], 0x3F003F00); k.s_mov_b32(sHLF[1], 0x3F003F00)
    k.s_mov_b32(sTO, 1 << 22)
    k.s_lshl_b32(sT0, sW, 5); k.s_add_u32(sT0, sT0, sH); k.s_mul_i32(sPWB, sT0, 2560)
    k.s_lshl_b32(sOAW, sW, 9)
    k.s_lshr_b32(sT1, sT0, 4)
    k.s_mul_i32(sRBASE, sT1, 81920)
    k.s_and_b32(sT2, sT0, 15)
    k.s_lshl_b32(sT2, sT2, 7)
    k.s_add_u32(sRBASE, sRBASE, sT2)
    k.s_mov_b32(sRSTR, 20480); k.s_mov_b32(S(3), 40960)
    k.s_lshr_b32(sT2, sT0, 2)
    k.s_lshl_b32(sMSB, sT2, 9)
    k.s_and_b32(sT2, sT0, 2); k.s_lshl_b32(sT2, sT2, 7); k.s_add_u32(sMSB, sMSB, sT2)
    k.s_and_b32(sT2, sT0, 1); k.s_lshl_b32(sT2, sT2, 6); k.s_add_u32(sMSB, sMSB, sT2)
    k.s_mov_b32(sRED, 1)
    k.wait(lgkm=0)
    lab = k.newlabel("rnorm")
    k.s_cmp_lt_u32(sW, 2)
    k.s_cbranch_scc1(lab)
    k.s_mov_b32(sRED, 0)
    k.s_mov_b32(sRBASE, 0); k.s_mov_b32(sMSB, 0)
    k.s_cmp_ge_u32(sT0, 80)
    k.s_cbranch_scc1(lab)
    k.s_mov_b32(sRED, 2)
    k.s_lshr_b32(sT1, sH, 3)
    k.s_mul_i32(sRBASE, sT1, 81920)
    k.s_and_b32(sT2, sH, 7); k.s_lshl_b32(sT2, sT2, 6)
    k.s_add_u32(sRBASE, sRBASE, sT2); k.s_add_u32(sRBASE, sRBASE, 2048)
    k.s_mov_b32(sRSTR, 40960); k.s_mov_b32(S(3), 163840)
    k.s_add_u32(sT1, sT1, 16); k.s_lshl_b32(sMSB, sT1, 9)
    k.s_and_b32(sT2, sH, 4); k.s_lshl_b32(sT2, sT2, 6); k.s_add_u32(sMSB, sMSB, sT2)
    k.s_and_b32(sT2, sH, 1); k.s_lshl_b32(sT2, sT2, 7); k.s_add_u32(sMSB, sMSB, sT2)
    k.s_and_b32(sT2, sH, 2); k.s_lshl_b32(sT2, sT2, 5); k.s_add_u32(sMSB, sMSB, sT2)
    k.label(lab)
    k.extend(red_addr(False, vRL, x)); k.extend(red_addr(True, y, x))
    k.s_cmp_eq_u32(sRED, 2)
    k.s_cselect_b64(S(96, 2), -1, 0)
    k.v_cndmask_b32(vRL, vRL, y, S(96, 2))
    k.v_lshlrev_b32(x, 2, c4)
    k.v_lshl_add_u32(x, g, 4, x)
    k.v_bfe_u32(y, l, 2, 1)
    k.v_lshl_add_u32(y, y, 7, x)
    k.v_cndmask_b32(x, y, x, S(96, 2))
    k.v_add_u32(vMS, sMSB, x)

def red_addr(special, vRL, tmp):
    sh = 2 if special else 3
    return [I("v_lshrrev_b32", vRL, 4 + sh, vL16), I("v_mul_u32_u24", vRL, 2560, vRL),
            I("v_and_b32", tmp, (48 if special else 112), vL16), I("v_add_u32", vRL, vRL, tmp)]

def set_rsoff(k):
    k.s_add_u32(sR[0], sPAR, sRBASE)
    k.s_add_u32(sR[1], sR[0], sRSTR)
    k.s_add_u32(sR[2], sR[0], sRSTR2)
    k.s_add_u32(sR[3], sR[1], sRSTR2)
    k.s_add_u32(sPST, sPAR, sPWB)

def prologue(k):
    k.s_lshr_b32(sH, S(2), 3)
    k.s_load_dwordx2(sPTR, S(0, 2), KA['ws'])
    k.s_load_dwordx2(sPTR2, S(0, 2), KA['dbg'])
    k.s_load_dwordx8(S(68, 8), S(0, 2), 8)
    k.s_load_dwordx2(S(76, 2), S(0, 2), KA['Wo'])
    lane_consts(k)
    k.wait(lgkm=0)
    srd(k, sWS, sPTR, WS_BYTES)
    srd(k, sDBG, sPTR2, 256)
    WSRD = {'q': S(80, 4), 'k': S(84, 4), 'v': S(88, 4), 'o': S(92, 4)}
    srd(k, WSRD['q'], S(70, 2), 576 * 8192)
    srd(k, WSRD['k'], S(72, 2), 576 * 8192)
    srd(k, WSRD['v'], S(74, 2), 576 * 8192)
    srd(k, WSRD['o'], S(76, 2), 4096 * 1152)
    srd(k, sW8, S(68, 2), 9216)
    neg = W(0)
    for i in range(4): k.v_mov_b32(neg[i], -1)
    for par in range(2):
        k.s_add_u32(sT0, sPWB, PART + par * PARTB)
        k.buffer_store_dwordx4(neg, vL16, sWS, sT0, mods="offen sc1")
        k.buffer_store_dwordx4(neg, vL16, sWS, sT0, mods="offen offset:1024 sc1")
        k.v_lshrrev_b32(vT, 1, vL16)
        k.buffer_store_dwordx2(neg[0:2], vT, sWS, sT0, mods="offen offset:2048 sc1")
    lab = k.newlabel("nomem")
    k.s_cmp_lg_u32(sW, 3)
    k.s_cbranch_scc1(lab)
    k.s_cmp_ge_u32(sH, 9)
    k.s_cbranch_scc1(lab)
    k.s_lshl_b32(sT0, sH, 10)
    k.s_add_u32(sT1, sT0, MEMB + MEMS)
    k.buffer_store_dwordx4(neg, vL16, sWS, sT1, mods="offen sc1")
    x, y = V(20), V(21)
    k.v_lshrrev_b32(x, 4, vL16)
    k.v_and_b32(y, 7, x)
    k.v_mul_u32_u24(y, 1152, y)
    k.v_lshrrev_b32(x, 3, x)
    k.v_lshl_add_u32(x, x, 4, y)
    k.s_lshl_b32(sT1, sH, 7)
    k.buffer_load_dwordx4(W(1), x, sW8, sT1, mods="offen")
    for i in range(4): k.v_min_u32(W(1)[i], sNEG, W(1)[i])
    k.s_add_u32(sT1, sT0, MEMB)
    k.buffer_store_dwordx4(W(1), vL16, sWS, sT1, mods="offen sc1")
    k.label(lab)

    def dma(im, ldsoff):
        if im[0] == 'o':
            _, P, kb = im
            k.s_mul_i32(sT0, sH, 128 * 1152)
            if P < 4:
                k.s_lshl_b32(sT1, sW, 8)
                k.s_add_u32(sT0, sT0, sT1)
                k.s_lshr_b32(sT1, sW, 1); k.s_xor_b32(sT1, sT1, kb); k.s_mul_i32(sT1, sT1, 64 * 1152)
                k.s_add_u32(sT0, sT0, sT1)
                k.s_add_u32(sT0, sT0, P * 64)
            else:
                k.s_and_b32(sT1, sW, 1); k.s_lshl_b32(sT1, sT1, 6)
                k.s_add_u32(sT0, sT0, sT1)
                k.s_lshr_b32(sT1, sW, 1); k.s_mul_i32(sT1, sT1, 64 * 1152)
                k.s_add_u32(sT0, sT0, sT1)
                k.s_add_u32(sT0, sT0, 1024)
            voff, step = vWO, 16 * 1152
        else:
            _, j = im
            if j == 2: k.s_mov_b32(sT0, 8 << 19)
            else:
                k.s_xor_b32(sT0, sW2, JX[j])
                k.s_lshl_b32(sT0, sT0, 19)
            k.s_add_u32(sT0, sT0, sHW)
            voff, step = vWQ, 16 * 8192
        for q in range(4):
            k.s_add_u32(M0, sFRB, ldsoff + q * 1024)
            if q: k.s_add_u32(sT0, sT0, step)
            k.buffer_load_dwordx4(voff, WSRD[im[0]], sT0, mods="offen lds")
    def trread(im, t, dst, base):
        for p in range(4):
            if im[0] == 'o':
                va, off = (vTRO if t == 0 else V(62)), (8 * (p // 2) + 2 * (p % 2)) * 64
            elif im[1] == 2:
                va, off = (vTRQ8 if t == 0 else V(61)), (2 * (p % 2) + 16 * (p // 2)) * 64
            else:
                va, off = vTRQ, (32 * t + 2 * (p % 2) + 16 * (p // 2)) * 64
            k.ds_read_b64_tr_b16(dst[2 * p:2 * p + 2], va, mods=f"offset:{base + off}")
    stream = REG_IMAGES + LDS_IMAGES
    nreg = len(REG_IMAGES)
    def slot(i): return (i - nreg) % 8
    for i in range(8): dma(stream[i], slot(i) * 4096)
    k.wait(vm=28)
    k.s_barrier()
    lab = k.newlabel("noann")
    k.s_cmp_lg_u32(sW, 0)
    k.s_cbranch_scc1(lab)
    k.s_getreg_b32(sT0, "hwreg(HW_REG_XCC_ID)")
    k.s_and_b32(sT0, sT0, 15)
    k.s_add_u32(sT0, sT0, 1)
    k.v_mov_b32(V(20), sT0)
    k.v_mov_b32(V(21), sH)
    k.buffer_store_byte(V(20), V(21), sDBG, 0, mods="offen sc1")
    k.wait(vm=0)
    k.label(lab)
    for i, im in enumerate(stream):
        left = min(7, len(stream) - 1 - i)
        k.wait(vm=4 * left)
        if i < nreg:
            for t in range(2): trread(im, t, FRAG[(im, t)], slot(i) * 4096)
            k.wait(lgkm=0)
            if i + 8 < len(stream): dma(stream[i + 8], slot(i + 8) * 4096)
        else:
            for t in range(2): trread(im, t, W(2 * t, 2), slot(i) * 4096)
            k.wait(lgkm=0)
            for t in range(2):
                for hq in range(2):
                    k.ds_write_b128(vFR, W(2 * t + hq), mods=f"offset:{slot(i) * 4096 + t * 2048 + hq * 1024}")
    k.wait(lgkm=0)
    k.s_mov_b32(sSTEP, 0)
    k.s_lshl_b32(sT0, sW, 11)
    k.s_add_u32(sGOWN, sT0, MEMB)
    k.s_add_u32(sG8, sW9, MEMB + 8192)
    k.s_mov_b32(sPAR, PART)
    k.s_mov_b32(sRSTR2, S(3))
    set_rsoff(k)
    k.s_mov_b32(sMST, MEMB + MEMS)
    k.s_mov_b32(sMPO, MEMB)
    k.s_lshl_b32(sT0, sH, 2); k.s_add_u32(sT0, sT0, sW)
    k.s_lshl_b32(sMPI, sT0, 10)
    k.s_cmp_lt_u32(sT0, 9)
    k.s_cselect_b32(sMPI, sMPI, 0x40000000)
    k.s_mov_b32(sTAG, 0); k.s_mov_b32(sTAGX, 0)
    k.s_add_u32(sMPP, sMPI, MEMB + 2 * MEMS)
    k.s_lshl_b32(sT0, sH, 13)
    k.s_lshl_b32(sT1, sW, 10)
    k.s_add_u32(sKXS, sT0, KS); k.s_add_u32(sKXS, sKXS, sT1)
    k.s_add_u32(sVXS, sT0, VT); k.s_add_u32(sVXS, sVXS, sT1); k.s_add_u32(sVXS, sVXS, sT1)
    k.s_lshl_b32(sT2, sH, 12)
    k.s_add_u32(sKMS, sT2, KM); k.s_add_u32(sKMS, sKMS, sT1)
    k.s_lshl_b32(sT2, sW9, 3)
    k.s_add_u32(sTCH, sT0, sT2)
    k.s_cmp_lt_u32(sW, 2)
    k.s_cselect_b32(sT2, 0, VT - KS)
    k.s_add_u32(sTCH, sTCH, sT2)
    k.s_add_u32(sTCH, sTCH, KS)
    k.s_lshl_b32(sT0, sH, 11)
    k.s_add_u32(sVMS, sT0, VM); k.s_add_u32(sVMS, sVMS, sOAW)
    k.s_lshl_b32(sKXM0, sW, 10)
    k.s_add_u32(sKXM0, sKXM0, L_KX)
    k.s_add_u32(sVXM0, sFRB, L_VXO)

def dma_kv():
    return [I("s_mov_b32", M0, sVXM0),
            dep(I("buffer_load_dwordx4", vL16, sWS, sVXS, mods="offen sc1 lds"), defs=["VX0"]),
            dep(I("buffer_load_dwordx4", vL16, sWS, sVXS, mods="offen offset:1024 sc1 lds"), defs=["VX1"]),
            I("s_mov_b32", M0, sKXM0),
            dep(I("buffer_load_dwordx4", vL16, sWS, sKXS, mods="offen sc1 lds"), defs=["KX0"]),
            I("s_add_u32", M0, sKXM0, 4096),
            I("s_add_u32", sT0, sKXS, 4096),
            dep(I("buffer_load_dwordx4", vL16, sWS, sT0, mods="offen sc1 lds"), defs=["KX1"])]

def team_sync(k, abort):
    x = V(20); y = V(21)
    k.v_lshrrev_b32(x, 4, vL16)
    k.v_and_b32(x, 31, x)
    loop = k.label()
    k.s_sub_u32(sTO, sTO, 1)
    k.s_cbranch_scc1(abort)
    k.buffer_load_ubyte(y, x, sDBG, 0, mods="offen sc1")
    k.v_cmp_eq_u32(VCC, 0, y)
    k.s_cbranch_vccnz(loop)
    k.v_readfirstlane_b32(sT0, y)
    k.v_cmp_ne_u32(VCC, sT0, y)
    k.s_cmp_eq_u64(VCC, 0)
    k.s_cselect_b32(sFAST, 1, 0)

STAMPS = False
TRACE = 0
TRACE0 = 0
RSLEEP = 0
GSLEEP = 0
PLAIN1 = True
B5 = True
LIGHT = False
RPACE = 0
GPACE = 0
NOWAIT = False
TOUCH = True
FINE = False
NODMA = False
STAMP_OFF = 0xB000000
def stamp(k, i):
    if STAMPS:
        k.s_memtime(S(84 + 2 * i, 2))
        k.wait(lgkm=0)
def stamp_flush(k, n):
    if not STAMPS: return
    k.s_lshl_b32(sT0, sH, 2); k.s_add_u32(sT0, sT0, sW); k.s_lshl_b32(sT0, sT0, 6); k.s_add_u32(sT0, sT0, sSTEP)
    k.s_lshl_b32(sT0, sT0, 6); k.s_add_u32(sT0, sT0, STAMP_OFF)
    k.v_mov_b32(vT, 0)
    for i, r in enumerate([S(84 + 2 * i) for i in range(n)] + [S(100), S(101), sTO]):
        k.v_mov_b32(W(2)[i % 4], r)
        k.buffer_store_dword(W(2)[i % 4], vT, sWS, sT0, mods=f"offen offset:{4 * i}")

def ldfrag(key, buf):
    _, off = FRAG[key]
    return [I("ds_read_b128", buf[0:4], vFR, mods=f"offset:{off}"),
            I("ds_read_b128", buf[4:8], vFR, mods=f"offset:{off + 1024}")]
def SM(acc, a, b): return I("v_smfmac_f32_16x16x64_bf16", acc, a, b, vIDX)
def MF(d, a, b, c): return I("v_mfma_f32_16x16x32_bf16", d, a, b, c)
def MF16(d, a, b, c): return I("v_mfma_f32_16x16x16_bf16", d, a, b, c)
def zero(q): return [I("v_mov_b64", q[0:2], 0), I("v_mov_b64", q[2:4], 0)]
BX, BY = W(9, 2), W(11, 2)
qa, ka, va = W(7), W(8), W(6)

def gather(k, abort, fast):
    def loads(sc=" sc1"):
        for j in range(4):
            k.buffer_load_dwordx4(W(j), vG, sWS, sGOWN, mods=f"offen offset:{512 * j}" + sc)
        k.buffer_load_dwordx4(W(4), vG, sWS, sG8, mods="offen" + sc)
    def check():
        t0, t1 = W(5)[0], W(5)[1]
        for j in range(5):
            a = W(j)
            if j < 4: k.ds_write_b128(vMW, a, mods=f"offset:{512 * j}")
            else: k.ds_write_b128(vM8, a)
            if j == 0:
                k.v_max3_u32(t0, a[0], a[1], a[2]); k.v_mov_b32(t1, a[3])
            else:
                k.v_max3_u32(t0, t0, a[0], a[1]); k.v_max3_u32(t1, t1, a[2], a[3])
        k.v_max_u32(t0, t0, t1)
        k.v_cmp_eq_u32(VCC, -1, t0)
    stamp(k, 0)
    loads("" if (fast and PLAIN1) else " sc1")
    k.extend(ldfrag((('q', 0), 0), BX) + ldfrag((('q', 0), 1), BY))
    if 'pbody' not in OPT:
        k.v_mov_b64(qa[0:2], -1); k.v_mov_b64(qa[2:4], -1)
        k.buffer_store_dwordx4(qa, vL16, sWS, sMPP, mods="offen" + ("" if fast else " sc1"))
    for q in (ka, va, qa): k.extend(zero(q))
    k.v_lshlrev_b32(vT2, 3, vL16)
    k.v_mov_b32(vT, 0x80000000)
    k.v_cndmask_b32(vT2, vT2, vT, sHI32)
    k.wait(lgkm=0)
    check()
    gok = k.newlabel("gok")
    k.s_cbranch_vccz(gok)
    retry = k.label()
    k.s_sub_u32(sTO, sTO, 1)
    k.s_cbranch_scc1(abort)
    loads()
    check()
    k.s_cbranch_vccnz(retry)
    k.label(gok)
    stamp(k, 1)

def body(fast, last=False):
    st = "" if fast else " sc1"
    o = []
    E = o.extend; Ap = o.append
    Ap(I("s_waitcnt_lgkm0"))
    Ap(dep(I("s_barrier"), defs=["B1"]))
    pool = [W(5), W(0), W(1), W(2), W(3), W(4)]
    Areg = {j: W(j) for j in range(5)}
    for j in range(5, 18): Areg[j] = pool[(j - 5) % 6]
    rds = []
    def nm():
        rds.append("RD%d" % len(rds)); return [rds[-1]]
    def rdA(j, dst, force=False):
        if j == 5:
            return [I("v_xor_b32", vT, 512, vM8), dep(I("ds_read_b128", dst, vT), uses=["B1"])]
        x4, y = 4 * (1 + (j - 6) // 4), (j - 6) % 4
        r = []
        if y == 0 or force: r.append(I("v_xor_b32", vT, x4 * 512, vMW))
        r.append(dep(I("ds_read_b128", dst, vT, mods=f"offset:{y * 512}"), uses=["B1"]))
        return r
    def frag(m, j):
        key = ((m, j // 2), j % 2)
        f = FRAG[key]
        if isinstance(f, tuple):
            buf = BX if j % 2 == 0 else BY
            if key[0] != ('q', 0): E(ldfrag(key, buf))
            return buf
        return f
    if not last:
        if 'pbody' in OPT:
            E([I("v_mov_b64", W(5)[0:2], -1), I("v_mov_b64", W(5)[2:4], -1)])
            Ap(I("buffer_store_dwordx4", W(5), vL16, sWS, sMPP, mods="offen" + st))
        d = dma_kv()
        dep(d[1], uses=["B1"])
        E(d)
        Ap(I("s_add_u32", sKXS, sKXS, 32 * 8192)); Ap(I("s_add_u32", sVXS, sVXS, 32 * 8192))
        Ap(I("s_add_u32", sTCH, sTCH, 32 * 8192))
        Ap(I("s_mov_b32", M0, L_SCR))
        if TOUCH: Ap(I("buffer_load_dword", vT2, sWS, sTCH, mods="offen lds"))
    chain = [0]
    def CH(ins):
        if 'nochain' in OPT: return ins
        chain[0] += 1
        return dep(ins, defs=["o:c%d" % chain[0]], uses=["o:c%d" % (chain[0] - 1)])
    for j in range(18):
        if j >= 5: E(rdA(j, Areg[j]))
        if not last: Ap(CH(SM(qa, Areg[j], frag('q', j))))
        Ap(CH(SM(ka, Areg[j], frag('k', j))))
        if j < NVM: Ap(CH(SM(va, Areg[j], frag('v', j))))
        if j == JB1B and not last:
            dep(o[-1], defs=["o:B1b"])
            Ap(dep(I("s_barrier"), defs=["B1b"], uses=["KX0", "KX1", "o:B1b"]))
    b = [Areg[j] for j in range(12, 18)]
    def rdT(base, ks, dst, a=vQR):
        return [dep(I("ds_read_b64_tr_b16", dst[0:2], a, mods=f"offset:{base + ks * 512}"), uses=["B2"], defs=nm()),
                dep(I("ds_read_b64_tr_b16", dst[2:4], a, mods=f"offset:{base + ks * 512 + 128}"), uses=["B2"], defs=nm())]
    def rdKX(jj, ks, dst): return [dep(I("ds_read_b128", dst, vL16, mods=f"offset:{L_KX + (jj * 4 + ks) * 1024}"), defs=nm(), uses=["B1b"])]
    kx = {(0, 0): W(9), (1, 0): W(10), (0, 1): W(11), (1, 1): W(12), (0, 2): b[2], (1, 2): b[3], (0, 3): W(9), (1, 3): W(10)}
    qB = [b[4], b[5], b[0], b[1]]
    kmA = [W(11), W(12), b[2], b[3]]
    if not last:
        for key in ((0, 0), (1, 0), (0, 1), (1, 1)): E(rdKX(*key, kx[key]))
        Ap(I("v_cvt_pk_bf16_f32", qa[0], qa[0], qa[1])); Ap(I("v_cvt_pk_bf16_f32", qa[1], qa[2], qa[3]))
        Ap(dep(I("ds_write_b64", vQW, qa[0:2], mods=f"offset:{L_QT}"), defs=["WQ"]))
    Ap(I("v_cvt_pk_bf16_f32", ka[0], ka[0], ka[1])); Ap(I("v_cvt_pk_bf16_f32", ka[1], ka[2], ka[3]))
    Ap(dep(I("ds_write_b64", vQW, ka[0:2], mods=f"offset:{L_KT}"), defs=["WK", "o:k"]))
    Ap(dep(I("s_barrier"), defs=["B2"], uses=["WQ", "WK"]))
    assert NVM == 8
    for i in range(6):
        Ap(CH(SM(va, b[i], frag('v', 12 + i))))
        if i < 4: E(rdA(8 + i, b[i], force=(i == 0)))
    for i in range(4): Ap(SM(va, b[i], frag('v', 8 + i)))
    Ap(I("v_cvt_pk_bf16_f32", va[0], va[0], va[1])); Ap(I("v_cvt_pk_bf16_f32", va[1], va[2], va[3]))
    vm = va[0:2]
    if last:
        Ap(I("v_add_u32", vT, sOAW, vQR))
        E(rdT(L_KT, 0, W(12), vT))
        Ap(I("v_lshrrev_b32", vT2, 1, vL16))
        Ap(I("buffer_store_dwordx2", vm, vT2, sWS, sVMS, mods="offen sc1"))
        Ap(I("buffer_store_dwordx4", W(12), vL16, sWS, sKMS, mods="offen sc1"))
        return o
    for ks in range(4): E(rdT(L_QT, ks, qB[ks]))
    s0, s1, sm = qa, ka, W(9)
    for ks in range(4):
        if ks >= 2: E(rdKX(0, ks, kx[(0, ks)])); E(rdKX(1, ks, kx[(1, ks)]))
        Ap(MF(s0, kx[(0, ks)], qB[ks], 0 if ks == 0 else s0))
        Ap(MF(s1, kx[(1, ks)], qB[ks], 0 if ks == 0 else s1))
    for ks in range(4):
        E(rdT(L_KT, ks, kmA[ks]))
        Ap(MF(sm, kmA[ks], qB[ks], 0 if ks == 0 else sm))
    Ap(I("v_lshrrev_b32", vT2, 1, vL16))
    Ap(I("buffer_store_dwordx2", vm, vT2, sWS, sVMS, mods="offen sc1"))
    vm0, vm1 = va[2:4], va[0:2]
    for r in range(2): Ap(I("v_cndmask_b32", vm0[r], vm[r], 0, sHI32))
    for r in range(2): Ap(I("v_cndmask_b32", vm1[r], 0, vm[r], sHI32))
    Ap(I("v_add_u32", vT, sOAW, vQR))
    E(rdT(L_KT, 0, W(12), vT))
    Ap(I("buffer_store_dwordx4", W(12), vL16, sWS, sKMS, mods="offen sc1"))
    vx = [b[2], b[3]]
    for t in range(2):
        Ap(dep(I("ds_read_b128", vx[t], vFR, mods=f"offset:{L_VXO + t * 1024}"), uses=["VX%d" % t]))
    ones = W(10)
    E([I("v_mov_b64", ones[0:2], sONE), I("v_mov_b64", ones[2:4], sONE)])
    mx, tt, cm = W(11)[0], W(11)[1], W(11)[2:4]
    E([I("v_max3_f32", mx, s0[0], s0[1], s0[2]), I("v_max3_f32", tt, s0[3], s1[0], s1[1]),
       I("v_max3_f32", mx, mx, s1[2], s1[3]), I("v_max_f32", mx, mx, tt),
       I("v_mov_b32", tt, mx), I("v_permlane32_swap_b32", mx, tt),
       I("v_max3_f32", mx, mx, tt, sm[0]), I("v_max3_f32", tt, sm[1], sm[2], sm[3]), I("v_max_f32", mx, mx, tt),
       I("v_mov_b32", tt, mx), I("v_permlane16_swap_b32", mx, tt), I("v_max_f32", mx, mx, tt),
       I("v_mul_f32", cm[0], sC[0], mx)])
    for q in (s0, s1, sm):
        for hh in range(2):
            Ap(I("v_pk_fma_f32", q[2 * hh:2 * hh + 2], q[2 * hh:2 * hh + 2], sC, cm, mods="op_sel_hi:[1,1,0] neg_lo:[0,0,1] neg_hi:[0,0,1]"))
    for q in (s0, s1, sm):
        for r in range(4): Ap(I("v_exp_f32", q[r], q[r]))
    E([I("v_cvt_pk_bf16_f32", s0[0], s0[0], s0[1]), I("v_cvt_pk_bf16_f32", s0[1], s0[2], s0[3]),
       I("v_cvt_pk_bf16_f32", s0[2], s1[0], s1[1]), I("v_cvt_pk_bf16_f32", s0[3], s1[2], s1[3]),
       I("v_cvt_pk_bf16_f32", sm[0], sm[0], sm[1]), I("v_cvt_pk_bf16_f32", sm[1], sm[2], sm[3])])
    Px, Pm = s0, sm[0:2]
    halves = sm[2:4]
    Ap(I("v_mov_b64", halves, sHLF))
    O = [qB[0], qB[1]]; L = qB[2]; own = qB[3]
    Ap(MF(L, ones, Px, 0)); Ap(MF(O[0], vx[0], Px, 0)); Ap(MF(O[1], vx[1], Px, 0))
    Ap(MF16(L, halves, Pm, L)); Ap(MF16(O[0], vm0, Pm, O[0])); Ap(MF16(O[1], vm1, Pm, O[1]))
    Ap(I("v_rcp_f32", L[0], L[0]))
    for t in range(2):
        for hh in range(2):
            Ap(I("v_pk_mul_f32", O[t][2 * hh:2 * hh + 2], O[t][2 * hh:2 * hh + 2], L[0:2], mods="op_sel_hi:[1,0]"))
    for t in range(2):
        for hh in range(2):
            Ap(I("v_cvt_pk_bf16_f32", own[2 * t + hh], O[t][2 * hh], O[t][2 * hh + 1]))
    Ap(I("v_add_u32", vT2, sOAW, vG))
    Ap(dep(I("ds_write_b128", vT2, own, mods=f"offset:{L_OA}"), defs=["WO", "o:o"]))
    Ap(dep(I("s_barrier"), defs=["B3"], uses=["WO"] + rds))
    allq = [W(n) for n in range(9)]
    oa = [own, O[0], O[1], L]
    acc = [q for q in allq if q.i not in [x.i for x in oa]]
    assert len(acc) == 5
    for x in range(1, 4):
        Ap(I("v_xor_b32", oa[x][0], x * 512, vT2))
        Ap(dep(I("ds_read_b128", oa[x], oa[x][0], mods=f"offset:{L_OA}"), uses=["B3"], defs=(["o:WO1"] if x == 3 else [])))
    for q in acc: E(zero(q))
    Ap(I("v_lshrrev_b32", vT, 1, vL16))
    def ofrag(P, x):
        key = (('o', P, x // 2), x % 2)
        f = FRAG[key]
        if isinstance(f, tuple):
            buf = BX if x % 2 == 0 else BY
            E(ldfrag(key, buf))
            return buf
        return f
    def post(P):
        x = acc[P]
        E([I("v_cvt_pk_bf16_f32", x[0], x[0], x[1]), I("v_cvt_pk_bf16_f32", x[1], x[2], x[3]),
           I("v_bfi_b32", x[0], 1, sTAG, x[0]),
           I("buffer_store_dwordx2", x[0:2], vT, sWS, sPST, mods=f"offen offset:{P * 512}" + st)])
    seq = [(P, 0) for P in (4, 0, 1, 2, 3)] + [(4, 1)] + [(P, x) for P in range(4) for x in (1, 2, 3)]
    if 'own2' in OPT: seq = [(4, 0), (0, 0), (4, 1), (0, 1), (0, 2), (0, 3)] + [(P, x) for P in range(1, 4) for x in range(4)]
    if 'own3' in OPT: seq = [(4, 0), (0, 0), (1, 0), (4, 1), (0, 1), (0, 2), (0, 3), (1, 1), (1, 2), (1, 3)] + [(P, x) for P in range(2, 4) for x in range(4)]
    for n, (P, x) in enumerate(seq):
        Ap(dep(SM(acc[P], oa[x], ofrag(P, x)), defs=["o:WO%d" % (n + 1)] if n else ["o:WOx"], uses=["o:WO%d" % n]))
        if (P, x) in ((4, 1), (0, 3), (1, 3), (2, 3), (3, 3)): post(P)
    return o

def body_full(fast): return body(fast)

def emit_sched(k, o, verbose=True):
    first = o[0]
    assert first.op == "s_waitcnt_lgkm0"
    nb = 0
    tr_n = [TRACE0, 0]
    nds = 0
    nvm = 0
    firstbar = True
    for ins in schedule(o[1:], verbose=verbose):
        if ins.op == "s_barrier" and firstbar:
            k.wait(lgkm=nds); firstbar = False
        if ins.cls == "ds": nds += 1
        if ins.cls == "vmem": nvm += 1
        k.items.append(ins)
        if TRACE and verbose:
            tr_n[0] += 1
            if tr_n[0] > 0 and tr_n[0] % TRACE == 0 and tr_n[1] < 13:
                k.items.append(Raw(f"s_memtime s[{72 + 2 * tr_n[1]}:{73 + 2 * tr_n[1]}]")); tr_n[1] += 1
        if ins.op == "s_barrier" and FINE and verbose:
            if nb >= 2: stamp(k, 3 + nb)
            nb += 1

def reduce_stage(k, fast, special, abort):
    st = "" if fast else " sc1"
    R = [W(9), W(10), W(11), W(12)]
    sel, racc = W(0), W(1)
    m, j, one = W(3)[0], W(3)[1], W(3)[2]
    def loads():
        for r in range(4): k.buffer_load_dwordx4(R[r], vRL, sWS, sR[r], mods="offen sc1")
    def work():
        t = [W(3)[i] for i in range(4)]
        for r in range(4):
            k.items.append(MF(racc, sel, R[r], 0 if r == 0 else racc))
            k.v_bitop3_b32(t[r], R[r][0], R[r][2], sTAG, mods="bitop3:0x7e")
        k.v_or3_b32(t[0], t[0], t[1], t[2])
        k.v_or_b32(t[0], t[0], t[3])
        k.v_and_b32(t[0], 1, t[0])
        k.v_cmp_ne_u32(VCC, 0, t[0])
    if RPACE == 0: loads()
    k.v_bfe_u32(m, vL16, 4, 4)
    k.v_and_b32(j, 3, m)
    k.v_lshlrev_b32(j, 2, j)
    k.v_lshrrev_b32(m, 2, m)
    k.v_add_u32(j, j, m)
    k.v_and_b32(m, 1, j)
    k.v_lshlrev_b32(m, 4, m)
    k.v_mov_b32(one, 0x3F80)
    k.v_lshlrev_b32(one, m, one)
    k.v_lshrrev_b32(j, 1, j)
    for r in range(4):
        k.v_cmp_eq_u32(VCC, r, j)
        k.v_cndmask_b32(sel[r], 0, one, VCC)
    if RPACE == 2: k.wait(vm=0)
    if RSLEEP: k.s_sleep(RSLEEP)
    if RPACE: loads()
    work()
    rok = k.newlabel("rok")
    k.s_cbranch_vccz(rok)
    retry = k.label()
    k.s_sub_u32(sTO, sTO, 1)
    k.s_cbranch_scc1(abort)
    loads()
    work()
    k.s_cbranch_vccnz(retry)
    k.label(rok)
    stamp(k, 3)
    for ror in ([4, 8] if special else [8]):
        for r in range(2):
            k.v_add_f32_dpp(racc[r], racc[r], racc[r], mods=f"row_ror:{ror} row_mask:0xf bank_mask:0xf")
    k.v_cvt_pk_bf16_f32(racc[0], racc[0], racc[1])
    k.v_min_u32(racc[0], sNEG, racc[0])
    k.buffer_store_dword(racc[0], vMS, sWS, sMST, mods="offen" + st)

def step_loop(k, fast, abort, done, flags=False):
    top = k.label()
    if LIGHT:
        sk = k.newlabel("sk")
        k.s_and_b32(sT0, sSTEP, 31)
        k.s_cmp_lg_u32(sT0, 16)
        k.s_cbranch_scc1(sk)
        k.s_memtime(S(84, 2)); k.wait(lgkm=0)
        k.s_lshl_b32(sT0, sH, 2); k.s_add_u32(sT0, sT0, sW); k.s_lshl_b32(sT0, sT0, 3); k.s_lshr_b32(sT1, sSTEP, 3); k.s_and_b32(sT1, sT1, 4); k.s_add_u32(sT0, sT0, sT1)
        k.s_add_u32(sT0, sT0, STAMP_OFF)
        k.v_mov_b32(vT, 0); k.v_mov_b32(vT2, S(84))
        k.buffer_store_dword(vT2, vT, sWS, sT0, mods="offen")
        k.label(sk)
    if TRACE:
        sk = k.newlabel("sk")
        k.s_and_b32(sT0, sSTEP, 7)
        k.s_cmp_lg_u32(sT0, 5)
        k.s_cbranch_scc1(sk)
        k.s_lshl_b32(sT0, sH, 2); k.s_add_u32(sT0, sT0, sW); k.s_lshl_b32(sT0, sT0, 6); k.s_add_u32(sT0, sT0, sSTEP)
        k.s_lshl_b32(sT0, sT0, 6); k.s_add_u32(sT0, sT0, STAMP_OFF)
        k.v_mov_b32(vT, 0)
        for i in range(13):
            k.v_mov_b32(W(2)[i % 4], S(72 + 2 * i))
            k.buffer_store_dword(W(2)[i % 4], vT, sWS, sT0, mods=f"offen offset:{4 * i}")
        k.label(sk)
    if STAMPS:
        sk = k.newlabel("sk")
        k.s_and_b32(sT0, sSTEP, 7)
        k.s_cmp_lg_u32(sT0, 5)
        k.s_cbranch_scc1(sk)
        k.s_memtime(S(100, 2)); k.wait(lgkm=0)
        k.s_mov_b32(S(101), S(100))
        stamp_flush(k, 7)
        k.label(sk)
    gather(k, abort, fast)
    last = k.newlabel("last")
    k.s_cmp_eq_u32(sSTEP, 63)
    k.s_cbranch_scc1(last)
    emit_sched(k, body_full(fast))
    stamp(k, 2)
    nored, spec = k.newlabel("nored"), k.newlabel("spec")
    k.s_cmp_eq_u32(sRED, 1)
    k.s_cbranch_scc0(spec)
    reduce_stage(k, fast, False, abort)
    k.s_branch(nored)
    k.label(spec)
    w3 = k.newlabel("w3")
    k.s_cmp_eq_u32(sRED, 0)
    k.s_cbranch_scc1(w3)
    reduce_stage(k, fast, True, abort)
    k.s_branch(nored)
    k.label(w3)
    k.label(nored)
    stamp(k, 4)
    k.s_add_u32(sSTEP, sSTEP, 1)
    k.s_xor_b32(sPAR, sPAR, PART ^ (PART + PARTB))
    set_rsoff(k)
    k.s_add_u32(sMPP, sMPP, MEMS)
    k.s_add_u32(sMST, sMST, MEMS)
    k.s_add_u32(sGOWN, sGOWN, MEMS)
    k.s_add_u32(sG8, sG8, MEMS)
    k.s_bfe_u32(sTAG, sSTEP, (1 << 16) | 1)
    k.s_add_u32(sKMS, sKMS, 32 * 4096)
    k.s_add_u32(sVMS, sVMS, 32 * 2048)
    if GPACE == 1: k.wait(vm=0)
    if B5: k.s_barrier()
    if GSLEEP: k.s_sleep(GSLEEP)
    k.s_branch(top)
    k.label(last)
    emit_sched(k, body(fast, last=True), verbose=False)
    k.s_branch(done)

def team_body(k, flags=False):
    abort = k.newlabel("abort")
    done = k.newlabel("done")
    slow = k.newlabel("slow")
    prologue(k)
    team_sync(k, abort)
    k.wait(vm=0)
    k.s_barrier()
    k.s_cmp_eq_u32(sFAST, 0)
    k.s_cbranch_scc1(slow)
    step_loop(k, True, abort, done, flags)
    k.label(slow)
    step_loop(k, False, abort, done, flags)
    k.label(done)
    k.wait(vm=0, lgkm=0)
    k.label(abort)
    k.s_endpgm()
```

```python
from asmlib import *
from layout import *
import struct
def f32(x): return struct.unpack("<I", struct.pack("<f", x))[0]
I = lambda op, *a, mods="": Ins(op, list(a), mods)

sWS, sA, sB, sC4 = S(4, 4), S(8, 4), S(12, 4), S(16, 4)
sU, sW, sSEG, sTO = S(20), S(21), S(22), S(23)
sT0, sT1, sT2, sT3, sT4, sT5 = [S(24 + i) for i in range(6)]
sP = [S(32 + 2 * i, 2) for i in range(6)]
vL, vL16 = V(1), V(2)

def srd(k, dst, ptr, nbytes):
    k.s_mov_b32(dst[0], ptr[0]); k.s_and_b32(dst[1], ptr[1], 0xffff)
    k.s_mov_b32(dst[2], nbytes); k.s_mov_b32(dst[3], 0x20000)

def common(k, ptrs=()):
    k.s_load_dwordx2(sP[0], S(0, 2), KA['ws'])
    for i, nm in enumerate(ptrs): k.s_load_dwordx2(sP[1 + i], S(0, 2), KA[nm])
    k.v_lshrrev_b32(V(3), 6, V(0))
    k.v_readfirstlane_b32(sW, V(3))
    k.v_and_b32(vL, 63, V(0))
    k.v_lshlrev_b32(vL16, 4, vL)
    k.s_mov_b32(sTO, 1 << 22)
    k.wait(lgkm=0)
    srd(k, sWS, sP[0], WS_BYTES)

class Flags:
    on = False
FL = dict(LN=0, QKV=1, TEAM=2, ATT=3, OP=4, R1=5, F1=6, F2=7)
def wait_flags(k, role, first, count, need, abort, vtmp, stride=1):
    if not Flags.on: return
    a, d = vtmp[0], vtmp[1]
    k.v_min_u32(a, count - 1, vL)
    k.v_mul_u32_u24(a, 4 * stride, a)
    if isinstance(first, int): k.s_mov_b32(sT5, FLAGS + 256 * FL[role] + 4 * first)
    else:
        k.s_lshl_b32(sT5, first, 2); k.s_add_u32(sT5, sT5, FLAGS + 256 * FL[role])
    ok = k.newlabel("fok")
    k.buffer_load_dword(d, a, sWS, sT5, mods="offen sc1")
    k.v_cmp_gt_u32(VCC, need, d)
    k.s_cbranch_vccz(ok)
    loop = k.label()
    k.s_sleep(2)
    k.s_sub_u32(sTO, sTO, 1)
    k.s_cbranch_scc1(abort)
    k.buffer_load_dword(d, a, sWS, sT5, mods="offen sc1")
    k.v_cmp_gt_u32(VCC, need, d)
    k.s_cbranch_vccnz(loop)
    k.label(ok)
def set_flag(k, role, idx, val, vtmp):
    if not Flags.on: return
    k.s_lshl_b32(sT5, idx, 2); k.s_add_u32(sT5, sT5, FLAGS + 256 * FL[role])
    k.v_mov_b32(vtmp[0], 0); k.v_mov_b32(vtmp[1], val)
    k.buffer_store_dword(vtmp[1], vtmp[0], sWS, sT5, mods="offen sc1")

def row_reduce8(k, x, t):
    k.v_add_f32_dpp(x, x, x, mods="quad_perm:[1,0,3,2] row_mask:0xf bank_mask:0xf")
    k.v_add_f32_dpp(x, x, x, mods="quad_perm:[2,3,0,1] row_mask:0xf bank_mask:0xf")
    k.v_add_f32_dpp(x, x, x, mods="row_half_mirror row_mask:0xf bank_mask:0xf")

def ln1(k, abort=None):
    srd(k, sA, sP[1], 2048 * 1152)
    X = V(16, 36); F = V(64, 72)
    a, o, s, t = V(4), V(5), V(6), V(7)
    k.v_lshrrev_b32(a, 3, vL)
    k.v_mul_u32_u24(o, 1152, a)
    k.v_and_b32(t, 7, vL)
    k.v_lshl_add_u32(o, t, 4, o)
    k.s_lshl_b32(sT0, sU, 5); k.s_lshl_b32(sT1, sW, 3); k.s_add_u32(sT0, sT0, sT1); k.s_mul_i32(sT0, sT0, 1152)
    for i in range(9): k.buffer_load_dwordx4(X[4 * i:4 * i + 4], o, sA, sT0, mods=f"offen offset:{128 * i}")
    k.v_lshrrev_b32(s, 1, t); k.v_lshlrev_b32(s, 10, s); k.v_and_b32(t, 1, t); k.v_lshl_add_u32(s, t, 9, s)
    k.v_add_u32(a, sT1, a); k.v_lshl_add_u32(o, a, 4, s)
    for i in range(36):
        k.v_lshlrev_b32(F[2 * i], 16, X[i]); k.v_and_b32(F[2 * i + 1], 0xffff0000, X[i])
    k.v_mov_b32(s, 0); k.v_mov_b32(t, 0)
    for i in range(36):
        k.v_add_f32(s, s, F[2 * i]); k.v_add_f32(t, t, F[2 * i + 1])
    k.v_add_f32(s, s, t); row_reduce8(k, s, t)
    k.v_mul_f32(s, f32(1 / 576), s)
    k.v_mov_b32(t, 0); k.v_mov_b32(a, 0)
    for i in range(36):
        k.v_sub_f32(F[2 * i], F[2 * i], s); k.v_sub_f32(F[2 * i + 1], F[2 * i + 1], s)
        k.v_fmac_f32(t, F[2 * i], F[2 * i]); k.v_fmac_f32(a, F[2 * i + 1], F[2 * i + 1])
    k.v_add_f32(t, t, a); row_reduce8(k, t, a)
    k.v_mov_b32(a, f32(1e-5)); k.v_fmac_f32(a, f32(1 / 576), t)
    k.v_rsq_f32(a, a)
    for i in range(36):
        k.v_mul_f32(F[2 * i], F[2 * i], a); k.v_mul_f32(F[2 * i + 1], F[2 * i + 1], a)
        k.v_cvt_pk_bf16_f32(X[i], F[2 * i], F[2 * i + 1])
    k.s_mul_i32(sT0, sU, 36864); k.s_add_u32(sT0, sT0, XN)
    for i in range(9):
        k.buffer_store_dwordx4(X[4 * i:4 * i + 4], o, sWS, sT0, mods="offen sc1")
        if i < 8: k.s_add_u32(sT0, sT0, 4096)
    if Flags.on:
        k.wait(vm=0); k.s_barrier()
        set_flag(k, 'LN', sU, 1, (V(4), V(5)))

def g32_weights(k, NT, wsrd, rowbytes, sCol, frags, ldsbase):
    RB = NT * 64
    LPR = RB // 16
    RPI = 64 // LPR
    vD, vR, t, u = V(4), V(5), V(6), V(7)
    k.v_lshrrev_b32(t, {4: 2, 8: 3}[LPR], vL)
    k.s_mov_b32(sT0, rowbytes)
    k.v_mul_lo_u32(vD, t, sT0)
    k.v_and_b32(t, LPR - 1, vL)
    k.v_lshl_add_u32(vD, t, 4, vD)
    k.v_lshrrev_b32(t, 5, vL); k.v_lshlrev_b32(t, 3, t)
    k.v_bfe_u32(u, vL, 2, 2); k.v_add_u32(t, t, u)
    k.v_mul_u32_u24(vR, RB, t)
    k.v_bfe_u32(t, vL, 4, 1); k.v_lshl_add_u32(vR, t, 5, vR)
    k.v_and_b32(t, 3, vL); k.v_lshl_add_u32(vR, t, 3, vR)
    k.v_add_u32(vR, ldsbase, vR)
    IMG = 64 * RB
    NSLOT = 32768 // IMG
    nins = 64 // RPI
    def dma(i):
        k.s_add_u32(sT1, sCol, i * 64 * rowbytes)
        for q in range(nins):
            k.s_add_u32(M0, ldsbase, (i % NSLOT) * IMG + q * 1024)
            if q: k.s_add_u32(sT1, sT1, RPI * rowbytes)
            k.buffer_load_dwordx4(vD, wsrd, sT1, mods="offen lds")
    for i in range(min(NSLOT, 9)): dma(i)
    for i in range(9):
        k.wait(vm=nins * min(NSLOT - 1, 8 - i))
        for ks in range(4):
            for tl in range(NT):
                for jj in range(2):
                    off = (i % NSLOT) * IMG + (16 * ks + 4 * jj) * RB + tl * 64
                    k.ds_read_b64_tr_b16(frags[4 * i + ks][tl][2 * jj:2 * jj + 2], vR, mods=f"offset:{off}")
        k.wait(lgkm=0)
        if i + NSLOT < 9: dma(i + NSLOT)

def g32_kloop(k, NT, frags, swap, acc, xb, vaddr):
    o = []
    for ks in range(36):
        o.append(I("ds_read_b128", xb[ks % 6], vaddr, mods=f"offset:{ks * 1024}"))
        for t in range(NT):
            a, b = (xb[ks % 6], frags[ks][t]) if swap else (frags[ks][t], xb[ks % 6])
            o.append(dep(I("v_mfma_f32_32x32x16_bf16", acc[t], a, b, 0 if ks == 0 else acc[t]),
                         defs=["o:c%d" % (ks * NT + t + 1)], uses=["o:c%d" % (ks * NT + t)]))
    k.extend(schedule(o))

def g32_loop(k, NT, frags, swap, src_off, epilogue, abort, pre_wait, post, nst):
    acc = [V(16 + 16 * t, 16) for t in range(NT)]
    xb = [V(64 + 4 * i, 4) for i in range(6)]
    sSRC, sM, vRD = S(44), S(45), V(8)
    def dma(buf):
        for q in range(9):
            k.s_add_u32(M0, sM, buf * 36864 + q * 1024)
            k.s_add_u32(sT1, sSRC, q * 1024)
            k.buffer_load_dwordx4(vL16, sWS, sT1, mods="offen lds")
    k.s_mul_i32(sM, sW, 9216)
    k.s_add_u32(sSRC, sM, src_off)
    k.s_mov_b32(sSEG, 0)
    k.v_add_u32(vRD, 36864, vL16)
    k.s_barrier()
    pre_wait(0)
    dma(0)
    k.wait(vm=0)
    top = k.label()
    for buf in range(2):
        k.s_add_u32(sSRC, sSRC, 36864)
        k.wait(vm=nst)
        k.s_barrier()
        post(-1)
        nodma = k.newlabel("nodma")
        k.s_cmp_ge_u32(sSEG, 63)
        k.s_cbranch_scc1(nodma)
        pre_wait(1)
        dma(1 - buf)
        k.label(nodma)
        g32_kloop(k, NT, frags, swap, acc, xb, vRD if buf else vL16)
        epilogue(acc)
        k.s_add_u32(sSEG, sSEG, 1)
    k.s_cmp_lt_u32(sSEG, 64)
    k.s_cbranch_scc1(top)
    k.wait(vm=0)
    k.s_barrier()
    post(0)

def qkv(k, abort):
    k.s_lshr_b32(sT2, sU, 4)
    k.s_cmp_eq_u32(sT2, 1)
    k.s_cselect_b64(S(46, 2), sP[2], sP[1])
    k.s_cmp_eq_u32(sT2, 2)
    k.s_cselect_b64(S(46, 2), sP[3], S(46, 2))
    srd(k, sA, S(46, 2), 576 * 8192)
    frags = [[(A(8 * i + 4 * t, 4) if i < 32 else V(224 + 8 * (i - 32) + 4 * t, 4)) for t in range(2)] for i in range(36)]
    sCol, sLB, sOUT = S(48), S(49), S(50)
    k.s_and_b32(sT0, sU, 15); k.s_lshl_b32(sCol, sT0, 9); k.s_lshl_b32(sT1, sW, 7); k.s_add_u32(sCol, sCol, sT1)
    k.s_lshl_b32(sLB, sW, 15)
    g32_weights(k, 2, sA, 8192, sCol, frags, sLB)
    k.s_and_b32(sT0, sU, 15)
    k.s_lshl_b32(sT0, sT0, 1); k.s_lshr_b32(sT1, sW, 1); k.s_add_u32(sT0, sT0, sT1); k.s_lshl_b32(sOUT, sT0, 13)
    k.s_mul_i32(sT1, sT2, KS - QS); k.s_add_u32(sOUT, sOUT, sT1); k.s_add_u32(sOUT, sOUT, QS)
    assert VT - KS == KS - QS
    vO, t, u, tok, hi = V(9), V(4), V(5), V(6), V(7)
    k.v_and_b32(tok, 31, vL); k.v_lshrrev_b32(hi, 5, vL)
    k.s_and_b32(sT3, sW, 1)
    lk, lv, lgo = k.newlabel("isk"), k.newlabel("isv"), k.newlabel("go")
    def pre_wait(d):
        if Flags.on:
            k.s_add_u32(sT4, sSEG, d)
            wait_flags(k, 'LN', sT4, 1, 1, abort, (V(10), V(11)))
    def post(d):
        if Flags.on:
            k.s_max_u32(sT4, sSEG, -d); k.s_add_u32(sT4, sT4, d)
            set_flag(k, 'QKV', sU, sT4, (V(10), V(11)))
    def mk_epi(tstride):
        def epi(acc):
            k.s_lshl_b32(sT0, sSEG, 18); k.s_add_u32(sT0, sT0, sOUT)
            for t_ in range(2):
                for i in range(8): k.v_cvt_pk_bf16_f32(acc[t_][i], acc[t_][2 * i], acc[t_][2 * i + 1])
                for kk in range(2):
                    k.buffer_store_dwordx4(acc[t_][4 * kk:4 * kk + 4], vO, sWS, sT0, mods=f"offen offset:{t_ * tstride + kk * 512} sc1")
        return epi
    k.s_cmp_eq_u32(sT2, 2); k.s_cbranch_scc1(lv)
    k.v_lshrrev_b32(t, 4, tok); k.v_lshlrev_b32(t, 12, t); k.v_and_b32(u, 15, tok); k.v_lshl_add_u32(vO, u, 4, t)
    k.s_cmp_eq_u32(sT2, 0); k.s_cbranch_scc1(lgo)
    k.v_bfe_u32(t, tok, 3, 1); k.v_lshlrev_b32(t, 12, t)
    k.v_and_b32(u, 7, tok); k.v_lshl_add_u32(vO, u, 4, t)
    k.v_lshrrev_b32(u, 4, tok); k.v_lshl_add_u32(vO, u, 7, vO)
    k.label(lgo)
    k.v_lshl_add_u32(vO, hi, 8, vO)
    k.s_lshl_b32(sT3, sT3, 11); k.v_add_u32(vO, sT3, vO)
    g32_loop(k, 2, frags, False, XN, mk_epi(1024), abort, pre_wait, post, 4)
    k.s_endpgm()
    k.label(lv)
    k.v_lshrrev_b32(t, 4, tok); k.v_lshlrev_b32(t, 10, t); k.v_and_b32(u, 15, tok); k.v_lshl_add_u32(vO, u, 4, t)
    k.v_lshl_add_u32(vO, hi, 8, vO)
    k.s_lshl_b32(sT3, sT3, 12); k.v_add_u32(vO, sT3, vO)
    g32_loop(k, 2, frags, True, XN, mk_epi(2048), abort, pre_wait, post, 4)
    k.s_endpgm()

def att(k, abort):
    sA_, sH_, sBLK, sOB = S(44), S(45), S(46), S(47)
    sC = S(48, 2); sHI32 = S(50, 2); sNINF = S(52); sONE = S(54, 2); sHLF = S(56, 2)
    MASK = [[[S(60 + 2 * (8 * 0 + 4 * jj + r), 2) for r in range(4)] for jj in range(2)],
            [[S(76 + 2 * (4 * jj + r), 2) for r in range(4)] for jj in range(2)]]
    k.s_lshl_b32(sA_, sU, 2); k.s_add_u32(sA_, sA_, sW)
    k.s_and_b32(sH_, sA_, 31); k.s_lshr_b32(sSEG, sA_, 5)
    k.s_mov_b32(sC[0], f32(SOFTC)); k.s_mov_b32(sC[1], f32(SOFTC))
    k.s_mov_b32(sONE[0], 0x3F803F80); k.s_mov_b32(sONE[1], 0x3F803F80)
    k.s_mov_b32(sHLF[0], 0x3F003F00); k.s_mov_b32(sHLF[1], 0x3F003F00)
    k.v_cmp_lt_u32(sHI32, 31, vL)
    g, n, kt, vL8, vNINF = V(4), V(5), V(6), V(7), V(8)
    k.v_lshrrev_b32(g, 4, vL); k.v_and_b32(n, 15, vL)
    k.v_lshrrev_b32(kt, 1, g); k.v_lshlrev_b32(kt, 4, kt); k.v_and_b32(g, 1, g); k.v_lshl_add_u32(kt, g, 2, kt)
    k.v_sub_u32(kt, kt, n)
    for qt in range(2):
        for jj in range(2):
            for r in range(4):
                k.v_cmp_lt_i32(MASK[qt][jj][r], 16 * qt - 8 * jj - r, kt)
    k.v_lshlrev_b32(vL8, 3, vL)
    k.v_mov_b32(vNINF, 0xFF800000)
    Q = [[V(16 + 16 * qt + 4 * ks, 4) for ks in range(4)] for qt in range(2)]
    Kx = [[V(48 + 16 * jj + 4 * ks, 4) for ks in range(4)] for jj in range(2)]
    Km = [V(80 + 4 * ks, 4) for ks in range(4)]
    Vx = [V(96 + 4 * et, 4) for et in range(8)]
    Vm = [V(128 + 2 * w, 2) for w in range(4)]
    Sx = [[V(136 + 12 * qt + 4 * j, 4) for j in range(3)] for qt in range(2)]
    O = [[V(160 + 32 * qt + 4 * et, 4) for et in range(8)] for qt in range(2)]
    L = [V(224 + 4 * qt, 4) for qt in range(2)]
    ones = V(232, 4); halves = V(236, 2)
    Bm = [[V(240 + 4 * qt + 2 * x, 2) for x in range(2)] for qt in range(2)]
    st = [V(248 + 4 * qt, 4) for qt in range(2)]
    k.v_mov_b64(ones[0:2], sONE); k.v_mov_b64(ones[2:4], sONE); k.v_mov_b64(halves, sHLF)
    MF = lambda d, a, b, c: I("v_mfma_f32_16x16x32_bf16", d, a, b, c)
    MF16 = lambda d, a, b, c: I("v_mfma_f32_16x16x16_bf16", d, a, b, c)
    top = k.label()
    k.s_lshl_b32(sBLK, sSEG, 5); k.s_add_u32(sBLK, sBLK, sH_)
    if Flags.on:
        k.s_add_u32(sT4, sSEG, 1)
        k.s_lshr_b32(sT3, sH_, 1)
        wait_flags(k, 'QKV', sT3, 3, sT4, abort, (V(10), V(11)), stride=16)
    k.s_lshl_b32(sT0, sBLK, 13)
    k.s_add_u32(sT1, sT0, QS); k.s_add_u32(sT2, sT0, QS + 4096)
    for qt in range(2):
        for ks in range(4): k.buffer_load_dwordx4(Q[qt][ks], vL16, sWS, sT2 if qt else sT1, mods=f"offen offset:{ks * 1024}")
    k.s_add_u32(sT1, sT0, KS); k.s_add_u32(sT2, sT0, KS + 4096)
    for jj in range(2):
        for ks in range(4): k.buffer_load_dwordx4(Kx[jj][ks], vL16, sWS, sT2 if jj else sT1, mods=f"offen offset:{ks * 1024}")
    k.s_add_u32(sT1, sT0, VT); k.s_add_u32(sT2, sT0, VT + 4096)
    for et in range(8): k.buffer_load_dwordx4(Vx[et], vL16, sWS, sT2 if et >= 4 else sT1, mods=f"offen offset:{(et % 4) * 1024}")
    k.s_add_u32(sOB, sT0, OS)
    o = []
    for qt in range(2):
        for jj in range(2):
            for ks in range(4): o.append(MF(Sx[qt][jj], Kx[jj][ks], Q[qt][ks], 0 if ks == 0 else Sx[qt][jj]))
            for r in range(4): o.append(I("v_cndmask_b32", Sx[qt][jj][r], Sx[qt][jj][r], vNINF, MASK[qt][jj][r]))
    k.extend(schedule(o))
    k.wait(vm=0)
    if Flags.on:
        k.s_add_u32(sT4, sSEG, 1)
        wait_flags(k, 'TEAM', sH_, 1, sT4, abort, (V(10), V(11)))
    k.s_lshl_b32(sT0, sBLK, 12); k.s_add_u32(sT0, sT0, KM)
    for ks in range(4): k.buffer_load_dwordx4(Km[ks], vL16, sWS, sT0, mods=f"offen offset:{ks * 1024}")
    k.s_lshl_b32(sT0, sBLK, 11); k.s_add_u32(sT0, sT0, VM)
    for w in range(4): k.buffer_load_dwordx2(Vm[w], vL8, sWS, sT0, mods=f"offen offset:{w * 512}")
    k.wait(vm=4)
    o = []
    E = o.extend; Ap = o.append
    for qt in range(2):
        s0, s1, sm = Sx[qt]
        for ks in range(4): Ap(MF(sm, Km[ks], Q[qt][ks], 0 if ks == 0 else sm))
        mx, tt, cm = st[qt][0], st[qt][1], st[qt][2:4]
        E([I("v_max3_f32", mx, s0[0], s0[1], s0[2]), I("v_max3_f32", tt, s0[3], s1[0], s1[1]),
           I("v_max3_f32", mx, mx, s1[2], s1[3]), I("v_max_f32", mx, mx, tt),
           I("v_mov_b32", tt, mx), I("v_permlane32_swap_b32", mx, tt),
           I("v_max3_f32", mx, mx, tt, sm[0]), I("v_max3_f32", tt, sm[1], sm[2], sm[3]), I("v_max_f32", mx, mx, tt),
           I("v_mov_b32", tt, mx), I("v_permlane16_swap_b32", mx, tt), I("v_max_f32", mx, mx, tt),
           I("v_mul_f32", cm[0], sC[0], mx)])
        for q in (s0, s1, sm):
            for hh in range(2):
                Ap(I("v_pk_fma_f32", q[2 * hh:2 * hh + 2], q[2 * hh:2 * hh + 2], sC, cm, mods="op_sel_hi:[1,1,0] neg_lo:[0,0,1] neg_hi:[0,0,1]"))
            for r in range(4): Ap(I("v_exp_f32", q[r], q[r]))
        E([I("v_cvt_pk_bf16_f32", s0[0], s0[0], s0[1]), I("v_cvt_pk_bf16_f32", s0[1], s0[2], s0[3]),
           I("v_cvt_pk_bf16_f32", s0[2], s1[0], s1[1]), I("v_cvt_pk_bf16_f32", s0[3], s1[2], s1[3]),
           I("v_cvt_pk_bf16_f32", sm[0], sm[0], sm[1]), I("v_cvt_pk_bf16_f32", sm[1], sm[2], sm[3])])
        for r in range(2):
            Ap(I("v_cndmask_b32", Bm[qt][0][r], sm[r], 0, sHI32)); Ap(I("v_cndmask_b32", Bm[qt][1][r], 0, sm[r], sHI32))
        Ap(MF(L[qt], ones, s0, 0)); Ap(MF16(L[qt], halves, sm[0:2], L[qt]))
        Ap(I("v_rcp_f32", L[qt][0], L[qt][0]))
    k.extend(schedule(o))
    k.wait(vm=0)
    o = []
    E = o.extend; Ap = o.append
    for qt in range(2):
        for et in range(8):
            Ap(MF(O[qt][et], Vx[et], Sx[qt][0], 0))
            Ap(MF16(O[qt][et], Vm[et // 2], Bm[qt][et % 2], O[qt][et]))
            for hh in range(2):
                Ap(I("v_pk_mul_f32", O[qt][et][2 * hh:2 * hh + 2], O[qt][et][2 * hh:2 * hh + 2], L[qt][0:2], mods="op_sel_hi:[1,0]"))
            d = O[qt][et & ~1]
            for hh in range(2):
                Ap(I("v_cvt_pk_bf16_f32", d[2 * (et % 2) + hh], O[qt][et][2 * hh], O[qt][et][2 * hh + 1]))
            if et % 2:
                if et == 1 and qt == 1: Ap(I("s_add_u32", sOB, sOB, 4096))
                Ap(I("buffer_store_dwordx4", d, vL16, sWS, sOB, mods=f"offen offset:{(et // 2) * 1024} sc1"))
    k.extend(schedule(o))
    if Flags.on:
        k.wait(vm=0)
        k.s_add_u32(sT4, sSEG, 1)
        set_flag(k, 'ATT', sA_, sT4, (V(10), V(11)))
    k.s_add_u32(sSEG, sSEG, 2)
    k.s_cmp_lt_u32(sSEG, 64)
    k.s_cbranch_scc1(top)
    k.s_endpgm()
att_spec = (16, att, [])

def sk(k, abort, NKG, rowmap, src, NB, dst, in_role, out_role):
    sAg, sBq, sKI, sLB, sCol = S(44), S(45), S(46), S(47), S(48)
    srd(k, sA, sP[1], NKG * 512 * 1152)
    k.s_lshr_b32(sAg, sU, 2); k.s_and_b32(sBq, sU, 3)
    k.s_lshl_b32(sKI, sAg, 2); k.s_add_u32(sKI, sKI, sW)
    k.s_lshl_b32(sLB, sW, 15)
    k.s_mul_i32(sCol, sKI, 128 * 1152); k.s_mul_i32(sT0, sBq, 288); k.s_add_u32(sCol, sCol, sT0)
    vD, vR, t, u, g, r4, c4, n = V(4), V(5), V(6), V(7), V(8), V(9), V(10), V(11)
    k.v_lshrrev_b32(g, 4, vL); k.v_bfe_u32(r4, vL, 2, 2); k.v_and_b32(c4, 3, vL); k.v_and_b32(n, 15, vL)
    k.v_lshrrev_b32(t, 2, vL); k.v_mul_u32_u24(vD, 1152, t); k.v_lshl_add_u32(vD, c4, 4, vD)
    if rowmap == 'o': k.v_lshl_add_u32(t, g, 2, r4)
    else:
        k.v_lshrrev_b32(t, 1, g); k.v_lshlrev_b32(t, 4, t); k.v_and_b32(u, 1, g); k.v_lshl_add_u32(t, u, 2, t); k.v_add_u32(t, t, r4)
    k.v_lshlrev_b32(t, 6, t); k.v_lshl_add_u32(vR, c4, 3, t); k.v_add_u32(vR, sLB, vR)
    Wf = [[A(16 * ct + 4 * ks, 4) for ks in range(4)] for ct in range(9)]
    imgs = [(P, hf) for P in range(5) for hf in range(2)]
    def dma(i):
        P, hf = imgs[i]
        k.s_add_u32(sT1, sCol, hf * 64 * 1152 + P * 64)
        for q in range(4):
            k.s_add_u32(M0, sLB, (i % 8) * 4096 + q * 1024)
            if q: k.s_add_u32(sT1, sT1, 16 * 1152)
            k.buffer_load_dwordx4(vD, sA, sT1, mods="offen lds")
    for i in range(8): dma(i)
    for i, (P, hf) in enumerate(imgs):
        k.wait(vm=4 * min(7, 9 - i))
        for c in range(2 if P < 4 else 1):
            for k2 in range(2):
                for jj in range(2):
                    off = (i % 8) * 4096 + (32 * k2 + (16 if rowmap == 'o' else 8) * jj) * 64 + c * 32
                    k.ds_read_b64_tr_b16(Wf[2 * P + c][2 * hf + k2][2 * jj:2 * jj + 2], vR, mods=f"offset:{off}")
        k.wait(lgkm=0)
        if i + 8 < 10: dma(i + 8)
    vWr = V(12)
    k.v_mul_u32_u24(vWr, 592, n); k.v_lshl_add_u32(vWr, g, 4, vWr); k.s_mul_i32(sT0, sW, 18944); k.v_add_u32(vWr, sT0, vWr)
    vRd = [V(16 + i) for i in range(5)]; vGo = [V(24 + i) for i in range(5)]
    k.s_mov_b32(sT0, 0x38E38E4)
    k.s_mov_b32(sT0, 119304648)
    k.s_mul_i32(sT1, sBq, 576)
    for i in range(5):
        k.v_add_u32(t, 256 * i, V(0))
        k.v_mul_hi_u32(u, t, sT0)
        k.v_mul_u32_u24(vD, 36, u); k.v_sub_u32(t, t, vD)
        k.v_mul_u32_u24(vRd[i], 592, u); k.v_lshl_add_u32(vRd[i], t, 4, vRd[i])
        k.v_mul_u32_u24(vGo[i], 2304, u); k.v_lshl_add_u32(vGo[i], t, 4, vGo[i]); k.v_add_u32(vGo[i], sT1, vGo[i])
    X = [[V(32 + 16 * qt + 4 * ks, 4) for ks in range(4)] for qt in range(2)]
    D = [[V(64 + 8 * ct + 4 * qt, 4) for qt in range(2)] for ct in range(9)]
    R = [[V(144 + 16 * i + 4 * w, 4) for w in range(4)] for i in range(5)]
    k.s_mov_b32(sSEG, 0)
    k.s_barrier()
    top = k.label()
    if Flags.on:
        k.s_add_u32(sT4, sSEG, 1)
        k.s_and_b32(sT3, sSEG, 1); k.s_mul_i32(sT3, sT3, NB); k.s_add_u32(sT3, sT3, sKI)
        wait_flags(k, in_role, sT3, 1, sT4, abort, (V(4), V(5)))
    k.s_mul_i32(sT0, sSEG, NB); k.s_add_u32(sT0, sT0, sKI); k.s_lshl_b32(sT0, sT0, 13)
    k.s_add_u32(sT1, sT0, src); k.s_add_u32(sT2, sT0, src + 4096)
    for ks in range(4):
        for qt in range(2): k.buffer_load_dwordx4(X[qt][ks], vL16, sWS, sT2 if qt else sT1, mods=f"offen offset:{ks * 1024}")
    o = []
    for ks in range(4):
        for ct in range(9):
            for qt in range(2):
                o.append(I("v_mfma_f32_16x16x32_bf16", D[ct][qt], Wf[ct][ks], X[qt][ks], 0 if ks == 0 else D[ct][qt]))
                if ks == 3: o.append(dep(I("ds_write_b128", vWr, D[ct][qt], mods=f"offset:{qt * 9472 + ct * 64}"), defs=["W%d%d" % (ct, qt)]))
    n_ = 0
    for ins in o:
        if ins.cls == "mfma":
            dep(ins, defs=["o:c%d" % (n_ + 1)], uses=["o:c%d" % n_]); n_ += 1
    k.extend(schedule(o))
    k.wait(lgkm=0)
    k.s_barrier()
    k.s_mul_i32(sT0, sSEG, NKG); k.s_add_u32(sT0, sT0, sAg); k.s_mul_i32(sT0, sT0, 73728); k.s_add_u32(sT0, sT0, dst)
    def part(i):
        o = []
        for w in range(4): o.append(I("ds_read_b128", R[i][w], vRd[i], mods=f"offset:{w * 18944}"))
        for (a_, b_) in ((0, 1), (2, 3), (0, 2)):
            for hh in range(2): o.append(I("v_pk_add_f32", R[i][a_][2 * hh:2 * hh + 2], R[i][a_][2 * hh:2 * hh + 2], R[i][b_][2 * hh:2 * hh + 2]))
        o.append(I("buffer_store_dwordx4", R[i][0], vGo[i], sWS, sT0, mods="offen sc1"))
        return o
    k.extend(schedule(sum((part(i) for i in range(4)), [])))
    skip = k.newlabel("skip")
    k.s_cmp_ge_u32(sW, 2)
    k.s_cbranch_scc1(skip)
    k.extend(part(4))
    k.label(skip)
    k.wait(vm=0)
    k.s_barrier()
    k.s_add_u32(sSEG, sSEG, 1)
    set_flag(k, out_role, sU, sSEG, (V(4), V(5)))
    k.s_cmp_lt_u32(sSEG, 64)
    k.s_cbranch_scc1(top)
    k.s_endpgm()
def op(k, abort): sk(k, abort, 8, 'o', OS, 32, P1, 'ATT', 'OP')
def f2(k, abort): sk(k, abort, 9, 'g', GG, 36, P2, 'F1', 'F2')
op_spec = (32, op, ['Wo'])
f2_spec = (36, f2, ['w2'])

def wave_sum(k, x, t):
    row_reduce8(k, x, t)
    k.v_add_f32_dpp(x, x, x, mods="row_mirror row_mask:0xf bank_mask:0xf")
    k.v_mov_b32(t, x); k.v_permlane16_swap_b32(x, t); k.v_add_f32(x, x, t)
    k.v_mov_b32(t, x); k.v_permlane32_swap_b32(x, t); k.v_add_f32(x, x, t)

def red(k, abort, second):
    NKG = 9 if second else 8
    sTok, sLIVE = S(44), S(46, 2)
    k.s_lshl_b32(sTok, sU, 2); k.s_add_u32(sTok, sTok, sW)
    k.v_cmp_gt_u32(sLIVE, 48, vL)
    vQ16, vQ8, vHN, t, u = V(4), V(5), V(6), V(7), V(8)
    vOOB = V(9)
    k.v_mov_b32(vOOB, 0x80000000)
    k.v_cndmask_b32(vQ16, vOOB, vL16, sLIVE)
    k.v_lshrrev_b32(t, 1, vL16); k.v_cndmask_b32(vQ8, vOOB, t, sLIVE)
    Pp = [[V(32 + 12 * a + 4 * i, 4) for i in range(3)] for a in range(NKG)]
    Hh = [V(144 + 4 * i, 4) for i in range(3)]
    Bz = [V(160 + 4 * i, 4) for i in range(3)]
    xr = [V(176 + 2 * i, 2) for i in range(3)]
    if second:
        srd(k, sA, sP[1], 1152); srd(k, sB, sP[2], 2048 * 1152)
        for i in range(3): k.buffer_load_dwordx2(xr[i], vQ8, sA, 0, mods=f"offen offset:{384 * i}")
        for i in range(3):
            for hh in range(2):
                k.v_lshlrev_b32(Bz[i][2 * hh], 16, xr[i][hh]); k.v_and_b32(Bz[i][2 * hh + 1], 0xffff0000, xr[i][hh])
    else:
        srd(k, sA, sP[1], 2048 * 1152)
        k.v_lshrrev_b32(t, 2, vL); k.v_lshlrev_b32(t, 10, t); k.v_bfe_u32(u, vL, 1, 1); k.v_lshl_add_u32(t, u, 9, t)
        k.v_and_b32(u, 1, vL); k.v_lshl_add_u32(t, u, 3, t); k.s_lshl_b32(sT0, sTok, 4); k.v_add_u32(t, sT0, t)
        k.v_cndmask_b32(vHN, vOOB, t, sLIVE)
    k.s_mov_b32(sSEG, 0)
    top = k.label()
    k.s_lshl_b32(sT2, sSEG, 5); k.s_add_u32(sT2, sT2, sTok)
    if not second:
        k.s_mul_i32(sT3, sT2, 1152)
        for i in range(3): k.buffer_load_dwordx2(xr[i], vQ8, sA, sT3, mods=f"offen offset:{384 * i}")
        k.wait(vm=0)
    if Flags.on:
        k.s_add_u32(sT4, sSEG, 1)
        wait_flags(k, 'F2' if second else 'OP', 0, NKG * 4, sT4, abort, (V(10), V(11)))
    k.s_mul_i32(sT0, sSEG, NKG * 73728); k.s_mul_i32(sT1, sTok, 2304); k.s_add_u32(sT0, sT0, sT1); k.s_add_u32(sT0, sT0, P2 if second else P1)
    k.s_mul_i32(sT1, sT2, 2304); k.s_add_u32(sT1, sT1, HH)
    if second:
        for i in range(3): k.buffer_load_dwordx4(Hh[i], vQ16, sWS, sT1, mods=f"offen offset:{768 * i}")
    for a in range(NKG):
        for i in range(3): k.buffer_load_dwordx4(Pp[a][i], vQ16, sWS, sT0, mods=f"offen offset:{768 * i}")
        if a < NKG - 1: k.s_add_u32(sT0, sT0, 73728)
    if second:
        for i in range(3):
            for hh in range(2): k.v_pk_add_f32(Hh[i][2 * hh:2 * hh + 2], Hh[i][2 * hh:2 * hh + 2], Bz[i][2 * hh:2 * hh + 2])
    else:
        for i in range(3):
            for hh in range(2):
                k.v_lshlrev_b32(Hh[i][2 * hh], 16, xr[i][hh]); k.v_and_b32(Hh[i][2 * hh + 1], 0xffff0000, xr[i][hh])
    for a in range(NKG):
        for i in range(3):
            for hh in range(2): k.v_pk_add_f32(Hh[i][2 * hh:2 * hh + 2], Hh[i][2 * hh:2 * hh + 2], Pp[a][i][2 * hh:2 * hh + 2])
    if second:
        k.s_mul_i32(sT3, sT2, 1152)
        for i in range(3):
            for hh in range(2): k.v_cvt_pk_bf16_f32(xr[i][hh], Hh[i][2 * hh], Hh[i][2 * hh + 1])
            k.buffer_store_dwordx2(xr[i], vQ8, sB, sT3, mods=f"offen offset:{384 * i}")
    else:
        for i in range(3): k.buffer_store_dwordx4(Hh[i], vQ16, sWS, sT1, mods=f"offen offset:{768 * i} sc1")
        s2, m_, q2 = V(12, 2), V(14), V(16, 2)
        C = [V(184 + 4 * i, 4) for i in range(3)]
        k.v_pk_add_f32(s2, Hh[0][0:2], Hh[0][2:4])
        for i in range(1, 3):
            for hh in range(2): k.v_pk_add_f32(s2, s2, Hh[i][2 * hh:2 * hh + 2])
        k.v_add_f32(s2[0], s2[0], s2[1]); wave_sum(k, s2[0], t)
        k.v_mul_f32(m_, f32(1 / 576), s2[0])
        k.v_cndmask_b32(V(14), 0, m_, sLIVE)
        k.v_mov_b64(q2, 0)
        for i in range(3):
            for hh in range(2):
                k.v_pk_add_f32(C[i][2 * hh:2 * hh + 2], Hh[i][2 * hh:2 * hh + 2], V(14, 2), mods="op_sel_hi:[1,0] neg_lo:[0,1] neg_hi:[0,1]")
                k.v_pk_fma_f32(q2, C[i][2 * hh:2 * hh + 2], C[i][2 * hh:2 * hh + 2], q2)
        k.v_add_f32(q2[0], q2[0], q2[1]); wave_sum(k, q2[0], t)
        k.v_mov_b32(V(14), f32(1e-5)); k.v_fmac_f32(V(14), f32(1 / 576), q2[0]); k.v_rsq_f32(V(14), V(14))
        k.s_mul_i32(sT3, sSEG, 36864); k.s_add_u32(sT3, sT3, HN)
        for i in range(3):
            for hh in range(2):
                k.v_pk_mul_f32(C[i][2 * hh:2 * hh + 2], C[i][2 * hh:2 * hh + 2], V(14, 2), mods="op_sel_hi:[1,0]")
                k.v_cvt_pk_bf16_f32(xr[i][hh], C[i][2 * hh], C[i][2 * hh + 1])
            k.buffer_store_dwordx2(xr[i], vHN, sWS, sT3, mods="offen sc1")
            if i < 2: k.s_add_u32(sT3, sT3, 12288)
    k.s_add_u32(sSEG, sSEG, 1)
    k.wait(vm=0)
    if not second: set_flag(k, 'R1', sTok, sSEG, (V(10), V(11)))
    k.s_cmp_lt_u32(sSEG, 64)
    k.s_cbranch_scc1(top)
    k.s_endpgm()
def red1(k, abort): red(k, abort, False)
def red2(k, abort): red(k, abort, True)
red1_spec = (8, red1, ['x'])
red2_spec = (8, red2, ['b2', 'out'])

def f1(k, abort):
    sF, sCol, sLB, sM = S(44), S(45), S(46), S(47)
    sC0, sC1, sOne = S(48, 2), S(50, 2), S(52, 2)
    srd(k, sA, sP[1], 576 * 9216); srd(k, sB, sP[2], 9216)
    k.s_cmp_ge_u32(sU, 36)
    k.s_cselect_b32(sSEG, 1, 0)
    k.s_mul_i32(sT0, sSEG, 36); k.s_sub_u32(sF, sU, sT0)
    k.s_lshl_b32(sCol, sF, 8); k.s_lshl_b32(sT1, sW, 6); k.s_add_u32(sCol, sCol, sT1)
    k.s_lshl_b32(sLB, sW, 15)
    frags = [[A(4 * i, 4)] for i in range(36)]
    bias = V(96, 16); braw = V(112, 8)
    vB, vO, t, u = V(9), V(10), V(4), V(5)
    k.v_lshrrev_b32(vB, 5, vL); k.v_lshlrev_b32(vB, 3, vB)
    for j in range(4): k.buffer_load_dwordx2(braw[2 * j:2 * j + 2], vB, sB, sCol, mods=f"offen offset:{16 * j}")
    for i in range(8):
        k.v_lshlrev_b32(bias[2 * i], 16, braw[i]); k.v_and_b32(bias[2 * i + 1], 0xffff0000, braw[i])
    g32_weights(k, 1, sA, 9216, sCol, frags, sLB)
    c0 = -2 * 1.4426950408889634 * 0.7978845608028654
    for i in range(2):
        k.s_mov_b32(sC0[i], f32(c0)); k.s_mov_b32(sC1[i], f32(c0 * 0.044715)); k.s_mov_b32(sOne[i], f32(1.0))
    vC0 = V(120, 2)
    k.v_mov_b64(vC0, sC0)
    k.v_bfe_u32(t, vL, 4, 1); k.v_lshlrev_b32(t, 12, t); k.v_and_b32(u, 15, vL); k.v_lshl_add_u32(vO, u, 4, t)
    k.v_lshrrev_b32(t, 5, vL); k.v_lshl_add_u32(vO, t, 8, vO); k.s_lshl_b32(sT0, sW, 10); k.v_add_u32(vO, sT0, vO)
    k.s_mul_i32(sM, sW, 9216)
    acc = [V(16, 16)]; xb = [V(64 + 4 * i, 4) for i in range(6)]; z = V(32, 16)
    k.s_barrier()
    top = k.label()
    if Flags.on:
        k.s_add_u32(sT4, sSEG, 1)
        wait_flags(k, 'R1', 0, 32, sT4, abort, (V(4), V(5)))
    k.s_mul_i32(sT0, sSEG, 36864); k.s_add_u32(sT0, sT0, sM); k.s_add_u32(sT0, sT0, HN)
    for q in range(9):
        k.s_add_u32(M0, sM, q * 1024)
        if q: k.s_add_u32(sT0, sT0, 1024)
        k.buffer_load_dwordx4(vL16, sWS, sT0, mods="offen lds")
    k.wait(vm=0)
    k.s_barrier()
    g32_kloop(k, 1, frags, False, acc, xb, vL16)
    a = acc[0]
    o = []
    for i in range(8):
        x, zz = a[2 * i:2 * i + 2], z[2 * i:2 * i + 2]
        o += [I("v_pk_add_f32", x, x, bias[2 * i:2 * i + 2]), I("v_pk_mul_f32", zz, x, x), I("v_pk_fma_f32", zz, zz, sC1, vC0),
              I("v_pk_mul_f32", zz, zz, x), I("v_exp_f32", zz[0], zz[0]), I("v_exp_f32", zz[1], zz[1]),
              I("v_pk_add_f32", zz, zz, sOne), I("v_rcp_f32", zz[0], zz[0]), I("v_rcp_f32", zz[1], zz[1]),
              I("v_pk_mul_f32", x, x, zz), I("v_cvt_pk_bf16_f32", z[i] if False else V(48 + i), x[0], x[1])]
    k.s_mul_i32(sT0, sSEG, 36); k.s_add_u32(sT0, sT0, sF); k.s_lshl_b32(sT0, sT0, 13); k.s_add_u32(sT0, sT0, GG)
    for kk in range(2): o.append(I("buffer_store_dwordx4", V(48 + 4 * kk, 4), vO, sWS, sT0, mods=f"offen offset:{kk * 512} sc1"))
    k.extend(schedule(o))
    k.wait(vm=0)
    k.s_barrier()
    if Flags.on:
        k.s_add_u32(sT4, sSEG, 1)
        set_flag(k, 'F1', sU, sT4, (V(4), V(5)))
    k.s_add_u32(sSEG, sSEG, 2)
    k.s_cmp_lt_u32(sSEG, 64)
    k.s_cbranch_scc1(top)
    k.s_endpgm()
f1_spec = (72, f1, ['w1', 'b1'])
```

```python
import sys, os
sys.path.insert(0, os.path.dirname(__file__))
from asmlib import *
from layout import *
import build, team, workers as wk

def role_kernel(name, n, fn, ptrs):
    k = K(name)
    ex = k.newlabel("exit")
    k.s_cmp_ge_u32(S(2), n)
    k.s_cbranch_scc1(ex)
    k.s_mov_b32(wk.sU, S(2))
    wk.common(k, ptrs)
    fn(k, ex)
    k.label(ex)
    k.s_endpgm()
    return k.finish()

ROLES = dict(ln1=(64, wk.ln1, ['x']), qkv=(48, wk.qkv, ['Wq', 'Wk', 'Wv']))
for nm in ('att', 'op', 'red1', 'f1', 'f2', 'red2'):
    if hasattr(wk, nm): ROLES[nm] = getattr(wk, nm + "_spec")
if __name__ == "__main__":
    names = sys.argv[2].split(",")
    launches, kernels = [], []
    for nm in names:
        if nm == "team":
            launches.append(("team_kernel", 256, 256, 163840)); kernels.append(("team_kernel", build.team_kernel(), 512, 256))
        else:
            n, fn, ptrs = ROLES[nm]
            launches.append((nm + "_kernel", n, 256, 163840)); kernels.append((nm + "_kernel", role_kernel(nm, n, fn, ptrs), 512, 256))
    build.assemble(launches, kernels, sys.argv[1])
```

```python
from asmlib import *
from layout import *
import struct, os
OPT = os.environ.get('TOPT', '')

def f32(x): return struct.unpack("<I", struct.pack("<f", x))[0]
I = lambda op, *a, mods="": Ins(op, list(a), mods)

L_MEMA, L_KX, L_QT, L_KT, L_OA, L_SCR, L_FR = 0, 9216, 17408, 19456, 21504, 23552, 24576
FRW = 34816
L_VXO = 32768

sWS, sW8, sDBG = S(4, 4), S(8, 4), S(12, 4)
sH, sW, sSTEP, sTO = S(16), S(17), S(18), S(19)
sT0, sT1, sT2, sT3 = S(20), S(21), S(22), S(23)
sHALF = S(24, 2)
sC = S(26, 2)
sHI32 = S(28, 2)
sONE = S(30, 2)
sGOWN, sG8 = S(32), S(33)
sPST = S(34)
sR = [S(35), S(36), S(37), S(38)]
sMST, sMPO = S(39), S(40)
sKXS, sVXS, sKMS, sVMS = S(41), S(42), S(43), S(44)
sRED = S(45)
sFRB = S(46)
sHW, sW2 = S(47), S(48)
sNEG = S(49)
sRBASE, sRSTR, sRSTR2 = S(50), S(51), S(71)
sKXM0, sVXM0 = S(52), S(53)
sFAST = S(54)
sMSB = S(55)
sPTR, sPTR2 = S(56, 2), S(58, 2)
sPWB = S(60)
sOAW = S(61)
sLOW8 = S(62, 2)
sTCH = S(64)
sW9 = S(65)
sKVOK, sFLT, sFLK = S(96), S(97), S(3)
FLAGS_ON = False
RTRACE = False
sHLF = S(100, 2) if False else S(98, 2)
sPAR = S(66)
sTAG, sMPP, sMPI, sTAGX = S(67), S(68), S(69), S(70)

vL16, vFR, vIDX, vQW, vQR, vG, vMW, vM8, vRL, vMS, vT, vT2 = [V(i) for i in range(12)]
def W(n, cnt=1): return V(12 + 4 * n, 4 * cnt)

JB1B = 10
NVM = 8
LDS_IMAGES = [('q', 0), ('q', 1), ('q', 2), ('q', 3), ('q', 4), ('k', 5), ('o', 0, 1), ('o', 2, 1)]
if 'imgB' in OPT: LDS_IMAGES = [('q', 0), ('k', 1), ('v', 2), ('v', 3), ('q', 5), ('o', 0, 1), ('o', 2, 1), ('o', 3, 0)]
ALL_IMAGES = [(m, j) for m in 'qkv' for j in range(9)] + [('o', P, kb) for P in range(4) for kb in range(2)] + [('o', 4, 0)]
REG_IMAGES = [im for im in ALL_IMAGES if im not in LDS_IMAGES]
FRAG = {}
_pool = [A(8 * i, 8) for i in range(32)] + [V(64 + 8 * i, 8) for i in range(24)]
for im in REG_IMAGES:
    for t in range(2): FRAG[(im, t)] = _pool.pop(0)
assert not _pool
for i, im in enumerate(LDS_IMAGES):
    for t in range(2): FRAG[(im, t)] = ('lds', i * 4096 + t * 2048)
JX = {0: 0, 1: 1, 3: 2, 4: 3, 5: 4, 6: 5, 7: 6, 8: 7}

def srd(k, dst, ptr, nbytes):
    k.s_mov_b32(dst[0], ptr[0])
    k.s_and_b32(dst[1], ptr[1], 0xffff)
    k.s_mov_b32(dst[2], nbytes)
    k.s_mov_b32(dst[3], 0x20000)

vWQ, vWO, vTRQ, vTRO, vTRQ8 = V(56), V(57), V(58), V(59), V(60)

def lane_consts(k):
    l, g, m, r4, c4, x, y = [V(20 + i) for i in range(7)]
    k.v_lshrrev_b32(x, 6, V(0))
    k.v_readfirstlane_b32(sW, x)
    k.v_and_b32(l, 63, V(0))
    k.v_lshrrev_b32(g, 4, l)
    k.v_and_b32(m, 15, l)
    k.v_lshrrev_b32(r4, 2, m)
    k.v_and_b32(c4, 3, m)
    k.v_lshlrev_b32(vL16, 4, l)
    k.s_mul_i32(sFRB, sW, FRW)
    k.s_add_u32(sFRB, sFRB, L_FR)
    k.v_add_u32(vFR, sFRB, vL16)
    k.v_and_b32(x, 8, l)
    k.v_cmp_ne_u32(sHALF, 0, x)
    k.v_cmp_eq_u32(sLOW8, 0, x)
    k.v_cmp_lt_u32(sHI32, 31, l)
    k.v_mov_b32(x, 0x4444)
    k.v_mov_b32(y, 0xEEEE)
    k.v_cndmask_b32(vIDX, x, y, sHALF)
    k.v_lshrrev_b32(x, 5, l)
    k.v_lshl_add_u32(x, x, 4, m)
    k.s_lshl_b32(sT0, sW, 5)
    k.v_add_u32(x, sT0, x)
    k.v_and_b32(y, 1, g)
    k.v_lshlrev_b32(y, 3, y)
    k.v_lshl_add_u32(vQW, x, 4, y)
    k.v_lshrrev_b32(x, 1, g)
    k.v_lshlrev_b32(x, 4, x)
    k.v_and_b32(y, 1, g)
    k.v_lshl_add_u32(x, y, 2, x)
    k.v_add_u32(x, x, r4)
    k.v_and_b32(y, 1, c4)
    k.v_lshlrev_b32(y, 3, y)
    k.v_lshl_add_u32(vQR, x, 4, y)
    k.v_and_b32(x, 7, l)
    k.v_lshlrev_b32(x, 4, x)
    k.v_lshl_add_u32(vG, g, 7, x)
    k.s_lshl_b32(sT1, sW, 11)
    k.v_add_u32(vMW, sT1, vG)
    k.s_and_b32(sT0, sW, 1)
    k.s_lshl_b32(sW9, sT0, 9)
    k.s_add_u32(sT0, sW9, 8192)
    k.v_add_u32(vM8, sT0, vG)
    k.v_lshrrev_b32(x, 2, l)
    k.v_and_b32(y, 3, l)
    k.v_lshlrev_b32(y, 4, y)
    k.v_lshl_add_u32(vWQ, x, 13, y)
    k.s_mov_b32(sT2, 1152)
    k.v_mul_lo_u32(x, x, sT2)
    k.v_add_u32(vWO, x, y)
    k.v_and_b32(x, 1, r4)
    k.v_lshl_add_u32(x, g, 2, x)
    k.v_lshlrev_b32(x, 6, x)
    k.v_lshrrev_b32(y, 1, r4)
    k.v_lshl_add_u32(y, y, 5, x)
    k.v_lshl_add_u32(y, c4, 3, y)
    k.v_add_u32(vTRQ, sFRB, y)
    k.s_lshl_b32(sT0, sW9, 2)
    k.v_xor_b32(y, sT0, y)
    k.v_add_u32(vTRQ8, sFRB, y)
    k.v_xor_b32(y, 2048, y)
    k.v_add_u32(V(61), sFRB, y)
    k.v_and_b32(x, 1, g)
    k.v_lshlrev_b32(x, 4, x)
    k.v_lshrrev_b32(y, 1, g)
    k.v_lshl_add_u32(x, y, 2, x)
    k.v_and_b32(y, 1, r4)
    k.v_add_u32(x, x, y)
    k.v_lshlrev_b32(x, 6, x)
    k.v_lshrrev_b32(y, 1, r4)
    k.v_lshl_add_u32(x, y, 5, x)
    k.v_lshl_add_u32(x, c4, 3, x)
    k.s_lshl_b32(sT0, sW9, 2)
    k.v_xor_b32(x, sT0, x)
    k.v_add_u32(vTRO, sFRB, x)
    k.v_xor_b32(x, 2048, x)
    k.v_add_u32(V(62), sFRB, x)
    k.s_lshl_b32(sW2, sW, 1)
    k.s_lshl_b32(sT0, sH, 8)
    k.s_lshl_b32(sT1, sW, 6)
    k.s_add_u32(sHW, sT0, sT1)
    k.s_mov_b32(sC[0], f32(SOFTC)); k.s_mov_b32(sC[1], f32(SOFTC))
    k.s_mov_b32(sONE[0], 0x3F803F80); k.s_mov_b32(sONE[1], 0x3F803F80)
    k.s_mov_b32(sNEG, 0xFFFFFFFE)
    k.s_mov_b32(sHLF[0], 0x3F003F00); k.s_mov_b32(sHLF[1], 0x3F003F00)
    k.s_mov_b32(sTO, 1 << 22)
    k.s_lshl_b32(sT0, sW, 5); k.s_add_u32(sT0, sT0, sH); k.s_mul_i32(sPWB, sT0, 2560)
    k.s_lshl_b32(sOAW, sW, 9)
    k.s_lshr_b32(sT1, sT0, 4)
    k.s_mul_i32(sRBASE, sT1, 81920)
    k.s_and_b32(sT2, sT0, 15)
    k.s_lshl_b32(sT2, sT2, 7)
    k.s_add_u32(sRBASE, sRBASE, sT2)
    k.s_mov_b32(sRSTR, 20480); k.s_mov_b32(S(3), 40960)
    k.s_lshr_b32(sT2, sT0, 2)
    k.s_lshl_b32(sMSB, sT2, 9)
    k.s_and_b32(sT2, sT0, 2); k.s_lshl_b32(sT2, sT2, 7); k.s_add_u32(sMSB, sMSB, sT2)
    k.s_and_b32(sT2, sT0, 1); k.s_lshl_b32(sT2, sT2, 6); k.s_add_u32(sMSB, sMSB, sT2)
    k.s_mov_b32(sRED, 1)
    k.wait(lgkm=0)
    lab = k.newlabel("rnorm")
    k.s_cmp_lt_u32(sW, 2)
    k.s_cbranch_scc1(lab)
    k.s_mov_b32(sRED, 0)
    k.s_mov_b32(sRBASE, 0); k.s_mov_b32(sMSB, 0)
    k.s_cmp_ge_u32(sT0, 80)
    k.s_cbranch_scc1(lab)
    k.s_mov_b32(sRED, 2)
    k.s_lshr_b32(sT1, sH, 3)
    k.s_mul_i32(sRBASE, sT1, 81920)
    k.s_and_b32(sT2, sH, 7); k.s_lshl_b32(sT2, sT2, 6)
    k.s_add_u32(sRBASE, sRBASE, sT2); k.s_add_u32(sRBASE, sRBASE, 2048)
    k.s_mov_b32(sRSTR, 40960); k.s_mov_b32(S(3), 163840)
    k.s_add_u32(sT1, sT1, 16); k.s_lshl_b32(sMSB, sT1, 9)
    k.s_and_b32(sT2, sH, 4); k.s_lshl_b32(sT2, sT2, 6); k.s_add_u32(sMSB, sMSB, sT2)
    k.s_and_b32(sT2, sH, 1); k.s_lshl_b32(sT2, sT2, 7); k.s_add_u32(sMSB, sMSB, sT2)
    k.s_and_b32(sT2, sH, 2); k.s_lshl_b32(sT2, sT2, 5); k.s_add_u32(sMSB, sMSB, sT2)
    k.label(lab)
    k.extend(red_addr(False, vRL, x)); k.extend(red_addr(True, y, x))
    k.s_cmp_eq_u32(sRED, 2)
    k.s_cselect_b64(S(96, 2), -1, 0)
    k.v_cndmask_b32(vRL, vRL, y, S(96, 2))
    k.v_lshlrev_b32(x, 2, c4)
    k.v_lshl_add_u32(x, g, 4, x)
    k.v_bfe_u32(y, l, 2, 1)
    k.v_lshl_add_u32(y, y, 7, x)
    k.v_cndmask_b32(x, y, x, S(96, 2))
    k.v_add_u32(vMS, sMSB, x)

def red_addr(special, vRL, tmp):
    sh = 2 if special else 3
    return [I("v_lshrrev_b32", vRL, 4 + sh, vL16), I("v_mul_u32_u24", vRL, 2560, vRL),
            I("v_and_b32", tmp, (48 if special else 112), vL16), I("v_add_u32", vRL, vRL, tmp)]

def set_rsoff(k):
    k.s_add_u32(sR[0], sPAR, sRBASE)
    k.s_add_u32(sR[1], sR[0], sRSTR)
    k.s_add_u32(sR[2], sR[0], sRSTR2)
    k.s_add_u32(sR[3], sR[1], sRSTR2)
    k.s_add_u32(sPST, sPAR, sPWB)

def prologue(k):
    k.s_lshr_b32(sH, S(2), 3)
    k.s_load_dwordx2(sPTR, S(0, 2), KA['ws'])
    k.s_load_dwordx2(sPTR2, S(0, 2), KA['dbg'])
    k.s_load_dwordx8(S(68, 8), S(0, 2), 8)
    k.s_load_dwordx2(S(76, 2), S(0, 2), KA['Wo'])
    lane_consts(k)
    k.wait(lgkm=0)
    srd(k, sWS, sPTR, WS_BYTES)
    srd(k, sDBG, sPTR2, 256)
    WSRD = {'q': S(80, 4), 'k': S(84, 4), 'v': S(88, 4), 'o': S(92, 4)}
    srd(k, WSRD['q'], S(70, 2), 576 * 8192)
    srd(k, WSRD['k'], S(72, 2), 576 * 8192)
    srd(k, WSRD['v'], S(74, 2), 576 * 8192)
    srd(k, WSRD['o'], S(76, 2), 4096 * 1152)
    srd(k, sW8, S(68, 2), 9216)
    neg = W(0)
    for i in range(4): k.v_mov_b32(neg[i], -1)
    for par in range(2):
        k.s_add_u32(sT0, sPWB, PART + par * PARTB)
        k.buffer_store_dwordx4(neg, vL16, sWS, sT0, mods="offen sc1")
        k.buffer_store_dwordx4(neg, vL16, sWS, sT0, mods="offen offset:1024 sc1")
        k.v_lshrrev_b32(vT, 1, vL16)
        k.buffer_store_dwordx2(neg[0:2], vT, sWS, sT0, mods="offen offset:2048 sc1")
    lab = k.newlabel("nomem")
    k.s_cmp_lg_u32(sW, 3)
    k.s_cbranch_scc1(lab)
    k.s_cmp_ge_u32(sH, 9)
    k.s_cbranch_scc1(lab)
    k.s_lshl_b32(sT0, sH, 10)
    k.s_add_u32(sT1, sT0, MEMB + MEMS)
    k.buffer_store_dwordx4(neg, vL16, sWS, sT1, mods="offen sc1")
    x, y = V(20), V(21)
    k.v_lshrrev_b32(x, 4, vL16)
    k.v_and_b32(y, 7, x)
    k.v_mul_u32_u24(y, 1152, y)
    k.v_lshrrev_b32(x, 3, x)
    k.v_lshl_add_u32(x, x, 4, y)
    k.s_lshl_b32(sT1, sH, 7)
    k.buffer_load_dwordx4(W(1), x, sW8, sT1, mods="offen")
    for i in range(4): k.v_min_u32(W(1)[i], sNEG, W(1)[i])
    k.s_add_u32(sT1, sT0, MEMB)
    k.buffer_store_dwordx4(W(1), vL16, sWS, sT1, mods="offen sc1")
    k.label(lab)

    def dma(im, ldsoff):
        if im[0] == 'o':
            _, P, kb = im
            k.s_mul_i32(sT0, sH, 128 * 1152)
            if P < 4:
                k.s_lshl_b32(sT1, sW, 8)
                k.s_add_u32(sT0, sT0, sT1)
                k.s_lshr_b32(sT1, sW, 1); k.s_xor_b32(sT1, sT1, kb); k.s_mul_i32(sT1, sT1, 64 * 1152)
                k.s_add_u32(sT0, sT0, sT1)
                k.s_add_u32(sT0, sT0, P * 64)
            else:
                k.s_and_b32(sT1, sW, 1); k.s_lshl_b32(sT1, sT1, 6)
                k.s_add_u32(sT0, sT0, sT1)
                k.s_lshr_b32(sT1, sW, 1); k.s_mul_i32(sT1, sT1, 64 * 1152)
                k.s_add_u32(sT0, sT0, sT1)
                k.s_add_u32(sT0, sT0, 1024)
            voff, step = vWO, 16 * 1152
        else:
            _, j = im
            if j == 2: k.s_mov_b32(sT0, 8 << 19)
            else:
                k.s_xor_b32(sT0, sW2, JX[j])
                k.s_lshl_b32(sT0, sT0, 19)
            k.s_add_u32(sT0, sT0, sHW)
            voff, step = vWQ, 16 * 8192
        for q in range(4):
            k.s_add_u32(M0, sFRB, ldsoff + q * 1024)
            if q: k.s_add_u32(sT0, sT0, step)
            k.buffer_load_dwordx4(voff, WSRD[im[0]], sT0, mods="offen lds")
    def trread(im, t, dst, base):
        for p in range(4):
            if im[0] == 'o':
                va, off = (vTRO if t == 0 else V(62)), (8 * (p // 2) + 2 * (p % 2)) * 64
            elif im[1] == 2:
                va, off = (vTRQ8 if t == 0 else V(61)), (2 * (p % 2) + 16 * (p // 2)) * 64
            else:
                va, off = vTRQ, (32 * t + 2 * (p % 2) + 16 * (p // 2)) * 64
            k.ds_read_b64_tr_b16(dst[2 * p:2 * p + 2], va, mods=f"offset:{base + off}")
    stream = REG_IMAGES + LDS_IMAGES
    nreg = len(REG_IMAGES)
    def slot(i): return (i - nreg) % 8
    for i in range(8): dma(stream[i], slot(i) * 4096)
    k.wait(vm=28)
    k.s_barrier()
    lab = k.newlabel("noann")
    k.s_cmp_lg_u32(sW, 0)
    k.s_cbranch_scc1(lab)
    k.s_getreg_b32(sT0, "hwreg(HW_REG_XCC_ID)")
    k.s_and_b32(sT0, sT0, 15)
    k.s_add_u32(sT0, sT0, 1)
    k.v_mov_b32(V(20), sT0)
    k.v_mov_b32(V(21), sH)
    k.buffer_store_byte(V(20), V(21), sDBG, 0, mods="offen sc1")
    k.wait(vm=0)
    k.label(lab)
    for i, im in enumerate(stream):
        left = min(7, len(stream) - 1 - i)
        k.wait(vm=4 * left)
        if i < nreg:
            for t in range(2): trread(im, t, FRAG[(im, t)], slot(i) * 4096)
            k.wait(lgkm=0)
            if i + 8 < len(stream): dma(stream[i + 8], slot(i + 8) * 4096)
        else:
            for t in range(2): trread(im, t, W(2 * t, 2), slot(i) * 4096)
            k.wait(lgkm=0)
            for t in range(2):
                for hq in range(2):
                    k.ds_write_b128(vFR, W(2 * t + hq), mods=f"offset:{slot(i) * 4096 + t * 2048 + hq * 1024}")
    k.wait(lgkm=0)
    k.s_mov_b32(sSTEP, 0)
    k.s_lshl_b32(sT0, sW, 11)
    k.s_add_u32(sGOWN, sT0, MEMB)
    k.s_add_u32(sG8, sW9, MEMB + 8192)
    k.s_mov_b32(sPAR, PART)
    k.s_mov_b32(sRSTR2, S(3))
    set_rsoff(k)
    k.s_mov_b32(sMST, MEMB + MEMS)
    k.s_mov_b32(sMPO, MEMB)
    k.s_lshl_b32(sT0, sH, 2); k.s_add_u32(sT0, sT0, sW)
    k.s_lshl_b32(sMPI, sT0, 10)
    k.s_cmp_lt_u32(sT0, 9)
    k.s_cselect_b32(sMPI, sMPI, 0x40000000)
    k.s_mov_b32(sTAG, 0); k.s_mov_b32(sTAGX, 0)
    k.s_add_u32(sMPP, sMPI, MEMB + 2 * MEMS)
    k.s_lshl_b32(sT0, sH, 13)
    k.s_lshl_b32(sT1, sW, 10)
    k.s_add_u32(sKXS, sT0, KS); k.s_add_u32(sKXS, sKXS, sT1)
    k.s_add_u32(sVXS, sT0, VT); k.s_add_u32(sVXS, sVXS, sT1); k.s_add_u32(sVXS, sVXS, sT1)
    k.s_lshl_b32(sT2, sH, 12)
    k.s_add_u32(sKMS, sT2, KM); k.s_add_u32(sKMS, sKMS, sT1)
    k.s_lshl_b32(sT2, sW9, 3)
    k.s_add_u32(sTCH, sT0, sT2)
    k.s_cmp_lt_u32(sW, 2)
    k.s_cselect_b32(sT2, 0, VT - KS)
    k.s_add_u32(sTCH, sTCH, sT2)
    k.s_add_u32(sTCH, sTCH, KS)
    k.s_lshl_b32(sT0, sH, 11)
    k.s_add_u32(sVMS, sT0, VM); k.s_add_u32(sVMS, sVMS, sOAW)
    k.s_lshl_b32(sKXM0, sW, 10)
    k.s_add_u32(sKXM0, sKXM0, L_KX)
    k.s_add_u32(sVXM0, sFRB, L_VXO)

def dma_kv():
    return [I("s_mov_b32", M0, sVXM0),
            dep(I("buffer_load_dwordx4", vL16, sWS, sVXS, mods="offen sc1 lds"), defs=["VX0"]),
            dep(I("buffer_load_dwordx4", vL16, sWS, sVXS, mods="offen offset:1024 sc1 lds"), defs=["VX1"]),
            I("s_mov_b32", M0, sKXM0),
            dep(I("buffer_load_dwordx4", vL16, sWS, sKXS, mods="offen sc1 lds"), defs=["KX0"]),
            I("s_add_u32", M0, sKXM0, 4096),
            I("s_add_u32", sT0, sKXS, 4096),
            dep(I("buffer_load_dwordx4", vL16, sWS, sT0, mods="offen sc1 lds"), defs=["KX1"])]

def team_sync(k, abort):
    x = V(20); y = V(21)
    k.v_lshrrev_b32(x, 4, vL16)
    k.v_and_b32(x, 31, x)
    loop = k.label()
    k.s_sub_u32(sTO, sTO, 1)
    k.s_cbranch_scc1(abort)
    k.buffer_load_ubyte(y, x, sDBG, 0, mods="offen sc1")
    k.v_cmp_eq_u32(VCC, 0, y)
    k.s_cbranch_vccnz(loop)
    k.v_readfirstlane_b32(sT0, y)
    k.v_cmp_ne_u32(VCC, sT0, y)
    k.s_cmp_eq_u64(VCC, 0)
    k.s_cselect_b32(sFAST, 1, 0)

STAMPS = False
TRACE = 0
TRACE0 = 0
RSLEEP = 0
GSLEEP = 0
PLAIN1 = True
B5 = True
LIGHT = False
RPACE = 0
GPACE = 0
NOWAIT = False
TOUCH = True
FINE = False
NODMA = False
STAMP_OFF = 0xB000000
def stamp(k, i):
    if STAMPS:
        k.s_memtime(S(84 + 2 * i, 2))
        k.wait(lgkm=0)
def stamp_flush(k, n):
    if not STAMPS: return
    k.s_lshl_b32(sT0, sH, 2); k.s_add_u32(sT0, sT0, sW); k.s_lshl_b32(sT0, sT0, 6); k.s_add_u32(sT0, sT0, sSTEP)
    k.s_lshl_b32(sT0, sT0, 6); k.s_add_u32(sT0, sT0, STAMP_OFF)
    k.v_mov_b32(vT, 0)
    for i, r in enumerate([S(84 + 2 * i) for i in range(n)] + [S(100), S(101), sTO]):
        k.v_mov_b32(W(2)[i % 4], r)
        k.buffer_store_dword(W(2)[i % 4], vT, sWS, sT0, mods=f"offen offset:{4 * i}")

def ldfrag(key, buf):
    _, off = FRAG[key]
    return [I("ds_read_b128", buf[0:4], vFR, mods=f"offset:{off}"),
            I("ds_read_b128", buf[4:8], vFR, mods=f"offset:{off + 1024}")]
def SM(acc, a, b): return I("v_smfmac_f32_16x16x64_bf16", acc, a, b, vIDX)
def MF(d, a, b, c): return I("v_mfma_f32_16x16x32_bf16", d, a, b, c)
def MF16(d, a, b, c): return I("v_mfma_f32_16x16x16_bf16", d, a, b, c)
def zero(q): return [I("v_mov_b64", q[0:2], 0), I("v_mov_b64", q[2:4], 0)]
BX, BY = W(9, 2), W(11, 2)
qa, ka, va = W(7), W(8), W(6)

def gather(k, abort, fast):
    def loads(sc=" sc1"):
        for j in range(4):
            k.buffer_load_dwordx4(W(j), vG, sWS, sGOWN, mods=f"offen offset:{512 * j}" + sc)
        k.buffer_load_dwordx4(W(4), vG, sWS, sG8, mods="offen" + sc)
    def check():
        t0, t1 = W(5)[0], W(5)[1]
        for j in range(5):
            a = W(j)
            if j < 4: k.ds_write_b128(vMW, a, mods=f"offset:{512 * j}")
            else: k.ds_write_b128(vM8, a)
            if j == 0:
                k.v_max3_u32(t0, a[0], a[1], a[2]); k.v_mov_b32(t1, a[3])
            else:
                k.v_max3_u32(t0, t0, a[0], a[1]); k.v_max3_u32(t1, t1, a[2], a[3])
        k.v_max_u32(t0, t0, t1)
        k.v_cmp_eq_u32(VCC, -1, t0)
    stamp(k, 0)
    loads("" if (fast and PLAIN1) else " sc1")
    k.extend(ldfrag((('q', 0), 0), BX) + ldfrag((('q', 0), 1), BY))
    if 'pbody' not in OPT:
        k.v_mov_b64(qa[0:2], -1); k.v_mov_b64(qa[2:4], -1)
        k.buffer_store_dwordx4(qa, vL16, sWS, sMPP, mods="offen" + ("" if fast else " sc1"))
    for q in (ka, va, qa): k.extend(zero(q))
    k.v_lshlrev_b32(vT2, 3, vL16)
    k.v_mov_b32(vT, 0x80000000)
    k.v_cndmask_b32(vT2, vT2, vT, sHI32)
    k.wait(lgkm=0)
    check()
    gok = k.newlabel("gok")
    k.s_cbranch_vccz(gok)
    retry = k.label()
    k.s_sub_u32(sTO, sTO, 1)
    k.s_cbranch_scc1(abort)
    loads()
    check()
    k.s_cbranch_vccnz(retry)
    k.label(gok)
    stamp(k, 1)

def body(fast, last=False):
    st = "" if fast else " sc1"
    o = []
    E = o.extend; Ap = o.append
    Ap(I("s_waitcnt_lgkm0"))
    Ap(dep(I("s_barrier"), defs=["B1"]))
    pool = [W(5), W(0), W(1), W(2), W(3), W(4)]
    Areg = {j: W(j) for j in range(5)}
    for j in range(5, 18): Areg[j] = pool[(j - 5) % 6]
    rds = []
    def nm():
        rds.append("RD%d" % len(rds)); return [rds[-1]]
    def rdA(j, dst, force=False):
        if j == 5:
            return [I("v_xor_b32", vT, 512, vM8), dep(I("ds_read_b128", dst, vT), uses=["B1"])]
        x4, y = 4 * (1 + (j - 6) // 4), (j - 6) % 4
        r = []
        if y == 0 or force: r.append(I("v_xor_b32", vT, x4 * 512, vMW))
        r.append(dep(I("ds_read_b128", dst, vT, mods=f"offset:{y * 512}"), uses=["B1"]))
        return r
    def frag(m, j):
        key = ((m, j // 2), j % 2)
        f = FRAG[key]
        if isinstance(f, tuple):
            buf = BX if j % 2 == 0 else BY
            if key[0] != ('q', 0): E(ldfrag(key, buf))
            return buf
        return f
    if not last:
        if 'pbody' in OPT:
            E([I("v_mov_b64", W(5)[0:2], -1), I("v_mov_b64", W(5)[2:4], -1)])
            Ap(I("buffer_store_dwordx4", W(5), vL16, sWS, sMPP, mods="offen" + st))
        d = dma_kv()
        dep(d[1], uses=["B1"])
        E(d)
        Ap(I("s_add_u32", sKXS, sKXS, 32 * 8192)); Ap(I("s_add_u32", sVXS, sVXS, 32 * 8192))
        Ap(I("s_add_u32", sTCH, sTCH, 32 * 8192))
        Ap(I("s_mov_b32", M0, L_SCR))
        if TOUCH: Ap(I("buffer_load_dword", vT2, sWS, sTCH, mods="offen lds"))
    if FLAGS_ON:
        Ap(I("v_mov_b32", vT2, sSTEP))
        Ap(dep(I("buffer_store_dword", vT2, "off", sWS, sFLT, mods="sc1"), uses=["B1"]))
    chain = [0]
    def CH(ins):
        if 'nochain' in OPT: return ins
        chain[0] += 1
        return dep(ins, defs=["o:c%d" % chain[0]], uses=["o:c%d" % (chain[0] - 1)])
    for j in range(18):
        if j >= 5: E(rdA(j, Areg[j]))
        if not last: Ap(CH(SM(qa, Areg[j], frag('q', j))))
        Ap(CH(SM(ka, Areg[j], frag('k', j))))
        if j < NVM: Ap(CH(SM(va, Areg[j], frag('v', j))))
        if j == JB1B and not last:
            dep(o[-1], defs=["o:B1b"])
            Ap(dep(I("s_barrier"), defs=["B1b"], uses=["KX0", "KX1", "o:B1b"]))
    b = [Areg[j] for j in range(12, 18)]
    def rdT(base, ks, dst, a=vQR):
        return [dep(I("ds_read_b64_tr_b16", dst[0:2], a, mods=f"offset:{base + ks * 512}"), uses=["B2"], defs=nm()),
                dep(I("ds_read_b64_tr_b16", dst[2:4], a, mods=f"offset:{base + ks * 512 + 128}"), uses=["B2"], defs=nm())]
    def rdKX(jj, ks, dst): return [dep(I("ds_read_b128", dst, vL16, mods=f"offset:{L_KX + (jj * 4 + ks) * 1024}"), defs=nm(), uses=["B1b"])]
    kx = {(0, 0): W(9), (1, 0): W(10), (0, 1): W(11), (1, 1): W(12), (0, 2): b[2], (1, 2): b[3], (0, 3): W(9), (1, 3): W(10)}
    qB = [b[4], b[5], b[0], b[1]]
    kmA = [W(11), W(12), b[2], b[3]]
    if not last:
        for key in ((0, 0), (1, 0), (0, 1), (1, 1)): E(rdKX(*key, kx[key]))
        Ap(I("v_cvt_pk_bf16_f32", qa[0], qa[0], qa[1])); Ap(I("v_cvt_pk_bf16_f32", qa[1], qa[2], qa[3]))
        Ap(dep(I("ds_write_b64", vQW, qa[0:2], mods=f"offset:{L_QT}"), defs=["WQ"]))
    Ap(I("v_cvt_pk_bf16_f32", ka[0], ka[0], ka[1])); Ap(I("v_cvt_pk_bf16_f32", ka[1], ka[2], ka[3]))
    Ap(dep(I("ds_write_b64", vQW, ka[0:2], mods=f"offset:{L_KT}"), defs=["WK", "o:k"]))
    Ap(dep(I("s_barrier"), defs=["B2"], uses=["WQ", "WK"]))
    assert NVM == 8
    for i in range(6):
        Ap(CH(SM(va, b[i], frag('v', 12 + i))))
        if i < 4: E(rdA(8 + i, b[i], force=(i == 0)))
    for i in range(4): Ap(SM(va, b[i], frag('v', 8 + i)))
    Ap(I("v_cvt_pk_bf16_f32", va[0], va[0], va[1])); Ap(I("v_cvt_pk_bf16_f32", va[1], va[2], va[3]))
    vm = va[0:2]
    if last:
        Ap(I("v_add_u32", vT, sOAW, vQR))
        E(rdT(L_KT, 0, W(12), vT))
        Ap(I("v_lshrrev_b32", vT2, 1, vL16))
        Ap(I("buffer_store_dwordx2", vm, vT2, sWS, sVMS, mods="offen sc1"))
        Ap(I("buffer_store_dwordx4", W(12), vL16, sWS, sKMS, mods="offen sc1"))
        return o
    for ks in range(4): E(rdT(L_QT, ks, qB[ks]))
    s0, s1, sm = qa, ka, W(9)
    for ks in range(4):
        if ks >= 2: E(rdKX(0, ks, kx[(0, ks)])); E(rdKX(1, ks, kx[(1, ks)]))
        Ap(MF(s0, kx[(0, ks)], qB[ks], 0 if ks == 0 else s0))
        Ap(MF(s1, kx[(1, ks)], qB[ks], 0 if ks == 0 else s1))
    for ks in range(4):
        E(rdT(L_KT, ks, kmA[ks]))
        Ap(MF(sm, kmA[ks], qB[ks], 0 if ks == 0 else sm))
    Ap(I("v_lshrrev_b32", vT2, 1, vL16))
    Ap(I("buffer_store_dwordx2", vm, vT2, sWS, sVMS, mods="offen sc1"))
    vm0, vm1 = va[2:4], va[0:2]
    for r in range(2): Ap(I("v_cndmask_b32", vm0[r], vm[r], 0, sHI32))
    for r in range(2): Ap(I("v_cndmask_b32", vm1[r], 0, vm[r], sHI32))
    Ap(I("v_add_u32", vT, sOAW, vQR))
    E(rdT(L_KT, 0, W(12), vT))
    Ap(I("buffer_store_dwordx4", W(12), vL16, sWS, sKMS, mods="offen sc1"))
    vx = [b[2], b[3]]
    for t in range(2):
        Ap(dep(I("ds_read_b128", vx[t], vFR, mods=f"offset:{L_VXO + t * 1024}"), uses=["VX%d" % t]))
    ones = W(10)
    E([I("v_mov_b64", ones[0:2], sONE), I("v_mov_b64", ones[2:4], sONE)])
    mx, tt, cm = W(11)[0], W(11)[1], W(11)[2:4]
    E([I("v_max3_f32", mx, s0[0], s0[1], s0[2]), I("v_max3_f32", tt, s0[3], s1[0], s1[1]),
       I("v_max3_f32", mx, mx, s1[2], s1[3]), I("v_max_f32", mx, mx, tt),
       I("v_mov_b32", tt, mx), I("v_permlane32_swap_b32", mx, tt),
       I("v_max3_f32", mx, mx, tt, sm[0]), I("v_max3_f32", tt, sm[1], sm[2], sm[3]), I("v_max_f32", mx, mx, tt),
       I("v_mov_b32", tt, mx), I("v_permlane16_swap_b32", mx, tt), I("v_max_f32", mx, mx, tt),
       I("v_mul_f32", cm[0], sC[0], mx)])
    for q in (s0, s1, sm):
        for hh in range(2):
            Ap(I("v_pk_fma_f32", q[2 * hh:2 * hh + 2], q[2 * hh:2 * hh + 2], sC, cm, mods="op_sel_hi:[1,1,0] neg_lo:[0,0,1] neg_hi:[0,0,1]"))
    for q in (s0, s1, sm):
        for r in range(4): Ap(I("v_exp_f32", q[r], q[r]))
    E([I("v_cvt_pk_bf16_f32", s0[0], s0[0], s0[1]), I("v_cvt_pk_bf16_f32", s0[1], s0[2], s0[3]),
       I("v_cvt_pk_bf16_f32", s0[2], s1[0], s1[1]), I("v_cvt_pk_bf16_f32", s0[3], s1[2], s1[3]),
       I("v_cvt_pk_bf16_f32", sm[0], sm[0], sm[1]), I("v_cvt_pk_bf16_f32", sm[1], sm[2], sm[3])])
    Px, Pm = s0, sm[0:2]
    halves = sm[2:4]
    Ap(I("v_mov_b64", halves, sHLF))
    O = [qB[0], qB[1]]; L = qB[2]; own = qB[3]
    Ap(MF(L, ones, Px, 0)); Ap(MF(O[0], vx[0], Px, 0)); Ap(MF(O[1], vx[1], Px, 0))
    Ap(MF16(L, halves, Pm, L)); Ap(MF16(O[0], vm0, Pm, O[0])); Ap(MF16(O[1], vm1, Pm, O[1]))
    Ap(I("v_rcp_f32", L[0], L[0]))
    for t in range(2):
        for hh in range(2):
            Ap(I("v_pk_mul_f32", O[t][2 * hh:2 * hh + 2], O[t][2 * hh:2 * hh + 2], L[0:2], mods="op_sel_hi:[1,0]"))
    for t in range(2):
        for hh in range(2):
            Ap(I("v_cvt_pk_bf16_f32", own[2 * t + hh], O[t][2 * hh], O[t][2 * hh + 1]))
    Ap(I("v_add_u32", vT2, sOAW, vG))
    Ap(dep(I("ds_write_b128", vT2, own, mods=f"offset:{L_OA}"), defs=["WO", "o:o"]))
    Ap(dep(I("s_barrier"), defs=["B3"], uses=["WO"] + rds))
    allq = [W(n) for n in range(9)]
    oa = [own, O[0], O[1], L]
    acc = [q for q in allq if q.i not in [x.i for x in oa]]
    assert len(acc) == 5
    for x in range(1, 4):
        Ap(I("v_xor_b32", oa[x][0], x * 512, vT2))
        Ap(dep(I("ds_read_b128", oa[x], oa[x][0], mods=f"offset:{L_OA}"), uses=["B3"], defs=(["o:WO1"] if x == 3 else [])))
    for q in acc: E(zero(q))
    Ap(I("v_lshrrev_b32", vT, 1, vL16))
    def ofrag(P, x):
        key = (('o', P, x // 2), x % 2)
        f = FRAG[key]
        if isinstance(f, tuple):
            buf = BX if x % 2 == 0 else BY
            E(ldfrag(key, buf))
            return buf
        return f
    def post(P):
        x = acc[P]
        E([I("v_cvt_pk_bf16_f32", x[0], x[0], x[1]), I("v_cvt_pk_bf16_f32", x[1], x[2], x[3]),
           I("v_bfi_b32", x[0], 1, sTAG, x[0]),
           I("buffer_store_dwordx2", x[0:2], vT, sWS, sPST, mods=f"offen offset:{P * 512}" + st)])
    seq = [(P, 0) for P in (4, 0, 1, 2, 3)] + [(4, 1)] + [(P, x) for P in range(4) for x in (1, 2, 3)]
    if 'own2' in OPT: seq = [(4, 0), (0, 0), (4, 1), (0, 1), (0, 2), (0, 3)] + [(P, x) for P in range(1, 4) for x in range(4)]
    if 'own3' in OPT: seq = [(4, 0), (0, 0), (1, 0), (4, 1), (0, 1), (0, 2), (0, 3), (1, 1), (1, 2), (1, 3)] + [(P, x) for P in range(2, 4) for x in range(4)]
    for n, (P, x) in enumerate(seq):
        Ap(dep(SM(acc[P], oa[x], ofrag(P, x)), defs=["o:WO%d" % (n + 1)] if n else ["o:WOx"], uses=["o:WO%d" % n]))
        if (P, x) in ((4, 1), (0, 3), (1, 3), (2, 3), (3, 3)): post(P)
    return o

def body_full(fast): return body(fast)

def emit_sched(k, o, verbose=True):
    first = o[0]
    assert first.op == "s_waitcnt_lgkm0"
    nb = 0
    tr_n = [TRACE0, 0]
    nds = 0
    nvm = 0
    firstbar = True
    for ins in schedule(o[1:], verbose=verbose):
        if ins.op == "s_barrier" and firstbar:
            k.wait(lgkm=nds); firstbar = False
        if ins.cls == "ds": nds += 1
        if ins.cls == "vmem": nvm += 1
        k.items.append(ins)
        if TRACE and verbose:
            tr_n[0] += 1
            if tr_n[0] > 0 and tr_n[0] % TRACE == 0 and tr_n[1] < 13:
                k.items.append(Raw(f"s_memtime s[{72 + 2 * tr_n[1]}:{73 + 2 * tr_n[1]}]")); tr_n[1] += 1
        if ins.op == "s_barrier" and FINE and verbose:
            if nb >= 2: stamp(k, 3 + nb)
            nb += 1

def reduce_stage(k, fast, special, abort):
    st = "" if fast else " sc1"
    R = [W(9), W(10), W(11), W(12)]
    sel, racc = W(0), W(1)
    m, j, one = W(3)[0], W(3)[1], W(3)[2]
    def loads():
        for r in range(4): k.buffer_load_dwordx4(R[r], vRL, sWS, sR[r], mods="offen sc1")
    def work():
        t = [W(3)[i] for i in range(4)]
        for r in range(4):
            k.items.append(MF(racc, sel, R[r], 0 if r == 0 else racc))
            k.v_bitop3_b32(t[r], R[r][0], R[r][2], sTAG, mods="bitop3:0x7e")
        k.v_or3_b32(t[0], t[0], t[1], t[2])
        k.v_or_b32(t[0], t[0], t[3])
        k.v_and_b32(t[0], 1, t[0])
        k.v_cmp_ne_u32(VCC, 0, t[0])
    if RPACE == 0: loads()
    k.v_bfe_u32(m, vL16, 4, 4)
    k.v_and_b32(j, 3, m)
    k.v_lshlrev_b32(j, 2, j)
    k.v_lshrrev_b32(m, 2, m)
    k.v_add_u32(j, j, m)
    k.v_and_b32(m, 1, j)
    k.v_lshlrev_b32(m, 4, m)
    k.v_mov_b32(one, 0x3F80)
    k.v_lshlrev_b32(one, m, one)
    k.v_lshrrev_b32(j, 1, j)
    for r in range(4):
        k.v_cmp_eq_u32(VCC, r, j)
        k.v_cndmask_b32(sel[r], 0, one, VCC)
    if RPACE == 2: k.wait(vm=0)
    if RSLEEP: k.s_sleep(RSLEEP)
    if RPACE: loads()
    work()
    rok = k.newlabel("rok")
    k.s_cbranch_vccz(rok)
    retry = k.label()
    k.s_sub_u32(sTO, sTO, 1)
    k.s_cbranch_scc1(abort)
    loads()
    work()
    k.s_cbranch_vccnz(retry)
    k.label(rok)
    stamp(k, 3)
    for ror in ([4, 8] if special else [8]):
        for r in range(2):
            k.v_add_f32_dpp(racc[r], racc[r], racc[r], mods=f"row_ror:{ror} row_mask:0xf bank_mask:0xf")
    k.v_cvt_pk_bf16_f32(racc[0], racc[0], racc[1])
    k.v_min_u32(racc[0], sNEG, racc[0])
    k.buffer_store_dword(racc[0], vMS, sWS, sMST, mods="offen" + st)

def step_loop(k, fast, abort, done, flags=False):
    top = k.label()
    if RTRACE:
        k.s_memrealtime(S(94, 2)); k.wait(lgkm=0)
        k.s_add_u32(sT0, sH, 128 * 2); k.s_lshl_b32(sT0, sT0, 7); k.s_add_u32(sT0, sT0, sSTEP)
        k.s_lshl_b32(sT0, sT0, 2); k.s_add_u32(sT0, sT0, 0xB100000)
        k.v_mov_b32(vT, S(94))
        k.buffer_store_dword(vT, "off", sWS, sT0)
    if FLAGS_ON:
        kvok = k.newlabel("kvok")
        k.s_add_u32(sT0, sSTEP, 2); k.s_min_u32(sT0, sT0, 64)
        k.s_cmp_ge_u32(sKVOK, sT0)
        k.s_cbranch_scc1(kvok)
        k.v_and_b32(vT, 64, vL16)
        lp = k.label()
        k.s_sub_u32(sTO, sTO, 1)
        k.s_cbranch_scc1(abort)
        k.buffer_load_dword(vT2, vT, sWS, sFLK, mods="offen sc1")
        k.v_readlane_b32(sT1, vT2, 0); k.v_readlane_b32(sT2, vT2, 4)
        k.s_min_u32(sKVOK, sT1, sT2)
        k.s_cmp_lt_u32(sKVOK, sT0)
        k.s_cbranch_scc1(lp)
        k.label(kvok)
    if LIGHT:
        sk = k.newlabel("sk")
        k.s_and_b32(sT0, sSTEP, 31)
        k.s_cmp_lg_u32(sT0, 16)
        k.s_cbranch_scc1(sk)
        k.s_memtime(S(84, 2)); k.wait(lgkm=0)
        k.s_lshl_b32(sT0, sH, 2); k.s_add_u32(sT0, sT0, sW); k.s_lshl_b32(sT0, sT0, 3); k.s_lshr_b32(sT1, sSTEP, 3); k.s_and_b32(sT1, sT1, 4); k.s_add_u32(sT0, sT0, sT1)
        k.s_add_u32(sT0, sT0, STAMP_OFF)
        k.v_mov_b32(vT, 0); k.v_mov_b32(vT2, S(84))
        k.buffer_store_dword(vT2, vT, sWS, sT0, mods="offen")
        k.label(sk)
    if TRACE:
        sk = k.newlabel("sk")
        k.s_and_b32(sT0, sSTEP, 7)
        k.s_cmp_lg_u32(sT0, 5)
        k.s_cbranch_scc1(sk)
        k.s_lshl_b32(sT0, sH, 2); k.s_add_u32(sT0, sT0, sW); k.s_lshl_b32(sT0, sT0, 6); k.s_add_u32(sT0, sT0, sSTEP)
        k.s_lshl_b32(sT0, sT0, 6); k.s_add_u32(sT0, sT0, STAMP_OFF)
        k.v_mov_b32(vT, 0)
        for i in range(13):
            k.v_mov_b32(W(2)[i % 4], S(72 + 2 * i))
            k.buffer_store_dword(W(2)[i % 4], vT, sWS, sT0, mods=f"offen offset:{4 * i}")
        k.label(sk)
    if STAMPS:
        sk = k.newlabel("sk")
        k.s_and_b32(sT0, sSTEP, 7)
        k.s_cmp_lg_u32(sT0, 5)
        k.s_cbranch_scc1(sk)
        k.s_memtime(S(100, 2)); k.wait(lgkm=0)
        k.s_mov_b32(S(101), S(100))
        stamp_flush(k, 7)
        k.label(sk)
    gather(k, abort, fast)
    last = k.newlabel("last")
    k.s_cmp_eq_u32(sSTEP, 63)
    k.s_cbranch_scc1(last)
    emit_sched(k, body_full(fast))
    stamp(k, 2)
    nored, spec = k.newlabel("nored"), k.newlabel("spec")
    k.s_cmp_eq_u32(sRED, 1)
    k.s_cbranch_scc0(spec)
    reduce_stage(k, fast, False, abort)
    k.s_branch(nored)
    k.label(spec)
    w3 = k.newlabel("w3")
    k.s_cmp_eq_u32(sRED, 0)
    k.s_cbranch_scc1(w3)
    reduce_stage(k, fast, True, abort)
    k.s_branch(nored)
    k.label(w3)
    k.label(nored)
    stamp(k, 4)
    k.s_add_u32(sSTEP, sSTEP, 1)
    k.s_xor_b32(sPAR, sPAR, PART ^ (PART + PARTB))
    set_rsoff(k)
    k.s_add_u32(sMPP, sMPP, MEMS)
    k.s_add_u32(sMST, sMST, MEMS)
    k.s_add_u32(sGOWN, sGOWN, MEMS)
    k.s_add_u32(sG8, sG8, MEMS)
    k.s_bfe_u32(sTAG, sSTEP, (1 << 16) | 1)
    k.s_add_u32(sKMS, sKMS, 32 * 4096)
    k.s_add_u32(sVMS, sVMS, 32 * 2048)
    if GPACE == 1: k.wait(vm=0)
    if B5: k.s_barrier()
    if GSLEEP: k.s_sleep(GSLEEP)
    k.s_branch(top)
    k.label(last)
    emit_sched(k, body(fast, last=True), verbose=False)
    k.s_branch(done)

def team_body(k, flags=False):
    abort = k.newlabel("abort")
    done = k.newlabel("done")
    slow = k.newlabel("slow")
    prologue(k)
    team_sync(k, abort)
    if FLAGS_ON:
        k.s_mov_b32(sKVOK, 0)
        k.s_lshl_b32(sT0, sH, 2)
        k.s_add_u32(sFLT, sT0, FLAGS + 512 * 2)
        k.s_cmp_eq_u32(sW, 0)
        k.s_cselect_b32(sFLT, sFLT, 0x40000000)
        k.s_lshr_b32(sT0, sH, 1); k.s_lshl_b32(sT0, sT0, 2)
        k.s_add_u32(sFLK, sT0, FLAGS + 512 * 1 + 64)
        lp = k.label()
        k.s_sub_u32(sTO, sTO, 1)
        k.s_cbranch_scc1(abort)
        k.buffer_load_dword(vT, "off", sDBG, 0, mods="offset:64 sc1")
        k.v_cmp_eq_u32(VCC, 0, vT)
        k.s_cbranch_vccnz(lp)
    k.wait(vm=0)
    k.s_barrier()
    k.s_cmp_eq_u32(sFAST, 0)
    k.s_cbranch_scc1(slow)
    step_loop(k, True, abort, done, flags)
    k.label(slow)
    step_loop(k, False, abort, done, flags)
    k.label(done)
    k.wait(vm=0, lgkm=0)
    if FLAGS_ON:
        k.s_barrier()
        k.v_mov_b32(vT, 64)
        k.buffer_store_dword(vT, "off", sWS, sFLT, mods="sc1")
    k.label(abort)
    k.s_endpgm()
```

```python
from asmlib import *
from layout import *
import struct
def f32(x): return struct.unpack("<I", struct.pack("<f", x))[0]
I = lambda op, *a, mods="": Ins(op, list(a), mods)

sWS, sA, sB, sC4 = S(4, 4), S(8, 4), S(12, 4), S(16, 4)
sU, sW, sSEG, sTO = S(20), S(21), S(22), S(23)
sT0, sT1, sT2, sT3, sT4, sT5 = [S(24 + i) for i in range(6)]
sP = [S(32 + 2 * i, 2) for i in range(6)]
vL, vL16 = V(1), V(2)

def srd(k, dst, ptr, nbytes):
    k.s_mov_b32(dst[0], ptr[0]); k.s_and_b32(dst[1], ptr[1], 0xffff)
    k.s_mov_b32(dst[2], nbytes); k.s_mov_b32(dst[3], 0x20000)

def common(k, ptrs=()):
    k.s_load_dwordx2(sP[0], S(0, 2), KA['ws'])
    for i, nm in enumerate(ptrs): k.s_load_dwordx2(sP[1 + i], S(0, 2), KA[nm])
    k.v_lshrrev_b32(V(3), 6, V(0))
    k.v_readfirstlane_b32(sW, V(3))
    k.v_and_b32(vL, 63, V(0))
    k.v_lshlrev_b32(vL16, 4, vL)
    k.s_mov_b32(sTO, 1 << 22)
    k.wait(lgkm=0)
    srd(k, sWS, sP[0], WS_BYTES)
    trace(k, 9, S(2), 0, (V(4), V(5)))

SLEEP = 8
class Flags:
    on = False
FL = dict(LN=0, QKV=1, TEAM=2, ATT=3, OP=4, R1=5, F1=6, F2=7)
FLO = dict(LN=(0, 6), QKV=(256, 6), TEAM=(1024, 0), ATT=(9216, 2), OP=(13312, 6), R1=(14336, 3), F1=(18432, 2), F2=(23552, 6))
FLAG_BYTES = 24576
def flag_addr(k, role, idx, extra=None):
    off, lg = FLO[role]
    if isinstance(idx, int):
        k.s_mov_b32(sT5, FLAGS + off + (idx >> lg) * 256 + (idx & ((1 << lg) - 1)) * 4)
    else:
        k.s_lshr_b32(sT5, idx, lg); k.s_lshl_b32(sT5, sT5, 8)
        if lg:
            k.s_and_b32(S(92), idx, (1 << lg) - 1); k.s_lshl_b32(S(92), S(92), 2); k.s_add_u32(sT5, sT5, S(92))
        k.s_add_u32(sT5, sT5, FLAGS + off)
    if extra is not None: k.s_add_u32(sT5, sT5, extra)
def wait_flags(k, role, first, count, need, abort, vtmp, stride=1, extra=None):
    if not Flags.on: return
    a, d = vtmp[0], vtmp[1]
    k.v_min_u32(a, count - 1, vL)
    k.v_mul_u32_u24(a, 4 * stride, a)
    flag_addr(k, role, first, extra)
    ok = k.newlabel("fok")
    k.buffer_load_dword(d, a, sWS, sT5, mods="offen sc1")
    k.v_cmp_gt_u32(VCC, need, d)
    k.s_cbranch_vccz(ok)
    loop = k.label()
    k.s_sleep(SLEEP)
    k.s_sub_u32(sTO, sTO, 1)
    k.s_cbranch_scc1(abort)
    k.buffer_load_dword(d, a, sWS, sT5, mods="offen sc1")
    k.v_cmp_gt_u32(VCC, need, d)
    k.s_cbranch_vccnz(loop)
    k.label(ok)
def wait_flags_cu(k, role, first, count, need, abort, vtmp, stride=1, extra=None):
    if Flags.on:
        sk_ = k.newlabel("nopoll")
        k.s_cmp_lg_u32(sW, 0)
        k.s_cbranch_scc1(sk_)
        wait_flags(k, role, first, count, need, abort, vtmp, stride, extra)
        k.label(sk_)
    k.s_barrier()
def set_flag(k, role, idx, val, vtmp, w0=False):
    if w0 and Flags.on:
        sk_ = k.newlabel("noset")
        k.s_cmp_lg_u32(sW, 0)
        k.s_cbranch_scc1(sk_)
        set_flag(k, role, idx, val, vtmp)
        k.label(sk_)
        return
    _set_flag(k, role, idx, val, vtmp)
TRACE_ON = False
TRACE_OFF = 0xB100000
def trace(k, rid, idx, val, vtmp):
    if not TRACE_ON: return
    k.s_memrealtime(S(94, 2)); k.wait(lgkm=0)
    k.s_add_u32(S(93), idx, 128 * rid); k.s_lshl_b32(S(93), S(93), 7)
    if isinstance(val, int): k.s_add_u32(S(93), S(93), val)
    else: k.s_add_u32(S(93), S(93), val)
    k.s_lshl_b32(S(93), S(93), 2); k.s_add_u32(S(93), S(93), TRACE_OFF)
    k.v_mov_b32(vtmp[0], S(94))
    k.buffer_store_dword(vtmp[0], "off", sWS, S(93))
def _set_flag(k, role, idx, val, vtmp):
    if not Flags.on: return
    trace(k, FL[role], idx, val, vtmp)
    k.s_lshl_b32(sT5, idx, 2); k.s_add_u32(sT5, sT5, FLAGS + 512 * FL[role])
    k.v_mov_b32(vtmp[1], val)
    k.buffer_store_dword(vtmp[1], "off", sWS, sT5, mods="sc1")

def wait_init(k, abort):
    if not Flags.on: return
    k.s_load_dwordx2(S(30, 2), S(0, 2), KA['dbg'])
    k.wait(lgkm=0)
    srd(k, sC4, S(30, 2), 256)
    loop = k.label()
    k.s_sub_u32(sTO, sTO, 1)
    k.s_cbranch_scc1(abort)
    k.buffer_load_dword(V(3), "off", sC4, 0, mods="offset:64 sc1")
    k.v_cmp_eq_u32(VCC, 0, V(3))
    k.s_cbranch_vccnz(loop)

def init_flags(k, abort):
    k.s_cmp_lg_u32(sW, 0)
    k.s_cbranch_scc1(abort)
    k.s_load_dwordx2(S(30, 2), S(0, 2), KA['dbg'])
    for i in range(4): k.v_mov_b32(V(4 + i), 0)
    k.s_mov_b32(sT0, FLAGS)
    for i in range(4): k.buffer_store_dwordx4(V(4, 4), vL16, sWS, sT0, mods=f"offen offset:{1024 * i} sc1")
    k.wait(vm=0, lgkm=0)
    srd(k, sC4, S(30, 2), 256)
    k.v_mov_b32(V(3), 1)
    k.buffer_store_dword(V(3), "off", sC4, 0, mods="offset:64 sc1")
    k.s_endpgm()

def row_reduce8(k, x, t):
    k.v_add_f32_dpp(x, x, x, mods="quad_perm:[1,0,3,2] row_mask:0xf bank_mask:0xf")
    k.v_add_f32_dpp(x, x, x, mods="quad_perm:[2,3,0,1] row_mask:0xf bank_mask:0xf")
    k.v_add_f32_dpp(x, x, x, mods="row_half_mirror row_mask:0xf bank_mask:0xf")

def ln1(k, abort=None):
    srd(k, sA, sP[1], 2048 * 1152)
    X = V(16, 36); F = V(64, 72)
    a, o, s, t = V(4), V(5), V(6), V(7)
    k.v_lshrrev_b32(a, 3, vL)
    k.v_mul_u32_u24(o, 1152, a)
    k.v_and_b32(t, 7, vL)
    k.v_lshl_add_u32(o, t, 4, o)
    k.s_lshl_b32(sT0, sU, 5); k.s_lshl_b32(sT1, sW, 3); k.s_add_u32(sT0, sT0, sT1); k.s_mul_i32(sT0, sT0, 1152)
    for i in range(9): k.buffer_load_dwordx4(X[4 * i:4 * i + 4], o, sA, sT0, mods=f"offen offset:{128 * i}")
    k.v_lshrrev_b32(s, 1, t); k.v_lshlrev_b32(s, 10, s); k.v_and_b32(t, 1, t); k.v_lshl_add_u32(s, t, 9, s)
    k.v_add_u32(a, sT1, a); k.v_lshl_add_u32(o, a, 4, s)
    for i in range(36):
        k.v_lshlrev_b32(F[2 * i], 16, X[i]); k.v_and_b32(F[2 * i + 1], 0xffff0000, X[i])
    k.v_mov_b32(s, 0); k.v_mov_b32(t, 0)
    for i in range(36):
        k.v_add_f32(s, s, F[2 * i]); k.v_add_f32(t, t, F[2 * i + 1])
    k.v_add_f32(s, s, t); row_reduce8(k, s, t)
    k.v_mul_f32(s, f32(1 / 576), s)
    k.v_mov_b32(t, 0); k.v_mov_b32(a, 0)
    for i in range(36):
        k.v_sub_f32(F[2 * i], F[2 * i], s); k.v_sub_f32(F[2 * i + 1], F[2 * i + 1], s)
        k.v_fmac_f32(t, F[2 * i], F[2 * i]); k.v_fmac_f32(a, F[2 * i + 1], F[2 * i + 1])
    k.v_add_f32(t, t, a); row_reduce8(k, t, a)
    k.v_mov_b32(a, f32(1e-5)); k.v_fmac_f32(a, f32(1 / 576), t)
    k.v_rsq_f32(a, a)
    for i in range(36):
        k.v_mul_f32(F[2 * i], F[2 * i], a); k.v_mul_f32(F[2 * i + 1], F[2 * i + 1], a)
        k.v_cvt_pk_bf16_f32(X[i], F[2 * i], F[2 * i + 1])
    k.s_mul_i32(sT0, sU, 36864); k.s_add_u32(sT0, sT0, XN)
    for i in range(9):
        k.buffer_store_dwordx4(X[4 * i:4 * i + 4], o, sWS, sT0, mods="offen sc1")
        if i < 8: k.s_add_u32(sT0, sT0, 4096)
    if Flags.on:
        wait_init(k, abort)
        k.wait(vm=0); k.s_barrier()
        set_flag(k, 'LN', sU, 1, (V(4), V(5)), w0=True)

def g32_weights(k, NT, wsrd, rowbytes, sCol, frags, ldsbase):
    RB = NT * 64
    LPR = RB // 16
    RPI = 64 // LPR
    vD, vR, t, u = V(4), V(5), V(6), V(7)
    k.v_lshrrev_b32(t, {4: 2, 8: 3}[LPR], vL)
    k.s_mov_b32(sT0, rowbytes)
    k.v_mul_lo_u32(vD, t, sT0)
    k.v_and_b32(t, LPR - 1, vL)
    k.v_lshl_add_u32(vD, t, 4, vD)
    k.v_lshrrev_b32(t, 5, vL); k.v_lshlrev_b32(t, 3, t)
    k.v_bfe_u32(u, vL, 2, 2); k.v_add_u32(t, t, u)
    k.v_mul_u32_u24(vR, RB, t)
    k.v_bfe_u32(t, vL, 4, 1); k.v_lshl_add_u32(vR, t, 5, vR)
    k.v_and_b32(t, 3, vL); k.v_lshl_add_u32(vR, t, 3, vR)
    k.v_add_u32(vR, ldsbase, vR)
    IMG = 64 * RB
    NSLOT = 32768 // IMG
    nins = 64 // RPI
    def dma(i):
        k.s_add_u32(sT1, sCol, i * 64 * rowbytes)
        for q in range(nins):
            k.s_add_u32(M0, ldsbase, (i % NSLOT) * IMG + q * 1024)
            if q: k.s_add_u32(sT1, sT1, RPI * rowbytes)
            k.buffer_load_dwordx4(vD, wsrd, sT1, mods="offen lds")
    for i in range(min(NSLOT, 9)): dma(i)
    for i in range(9):
        k.wait(vm=nins * min(NSLOT - 1, 8 - i))
        for ks in range(4):
            for tl in range(NT):
                for jj in range(2):
                    off = (i % NSLOT) * IMG + (16 * ks + 4 * jj) * RB + tl * 64
                    k.ds_read_b64_tr_b16(frags[4 * i + ks][tl][2 * jj:2 * jj + 2], vR, mods=f"offset:{off}")
        k.wait(lgkm=0)
        if i + NSLOT < 9: dma(i + NSLOT)

def g32_kloop(k, NT, frags, swap, acc, xb, vaddr):
    o = []
    for ks in range(36):
        o.append(I("ds_read_b128", xb[ks % 6], vaddr, mods=f"offset:{ks * 1024}"))
        for t in range(NT):
            a, b = (xb[ks % 6], frags[ks][t]) if swap else (frags[ks][t], xb[ks % 6])
            o.append(dep(I("v_mfma_f32_32x32x16_bf16", acc[t], a, b, 0 if ks == 0 else acc[t]),
                         defs=["o:c%d" % (ks * NT + t + 1)], uses=["o:c%d" % (ks * NT + t)]))
    k.extend(schedule(o))

def g32_loop(k, NT, frags, swap, src_off, epilogue, abort, pre_wait, post, nst):
    acc = [V(16 + 16 * t, 16) for t in range(NT)]
    xb = [V(64 + 4 * i, 4) for i in range(6)]
    sSRC, sM, vRD = S(44), S(45), V(8)
    def dma(buf):
        for q in range(9):
            k.s_add_u32(M0, sM, buf * 36864 + q * 1024)
            k.s_add_u32(sT1, sSRC, q * 1024)
            k.buffer_load_dwordx4(vL16, sWS, sT1, mods="offen lds")
    k.s_mul_i32(sM, sW, 9216)
    k.s_add_u32(sSRC, sM, src_off)
    k.s_mov_b32(sSEG, 0)
    k.v_add_u32(vRD, 36864, vL16)
    k.s_barrier()
    wait_init(k, abort)
    pre_wait(0)
    dma(0)
    k.wait(vm=0)
    top = k.label()
    for buf in range(2):
        k.s_add_u32(sSRC, sSRC, 36864)
        k.wait(vm=nst)
        k.s_barrier()
        post(-1)
        nodma = k.newlabel("nodma")
        k.s_cmp_ge_u32(sSEG, 63)
        k.s_cbranch_scc1(nodma)
        pre_wait(1)
        dma(1 - buf)
        k.label(nodma)
        g32_kloop(k, NT, frags, swap, acc, xb, vRD if buf else vL16)
        epilogue(acc)
        k.s_add_u32(sSEG, sSEG, 1)
    k.s_cmp_lt_u32(sSEG, 64)
    k.s_cbranch_scc1(top)
    k.wait(vm=0)
    k.s_barrier()
    post(0)

def qkv(k, abort):
    k.s_lshr_b32(sT2, sU, 4)
    k.s_cmp_eq_u32(sT2, 1)
    k.s_cselect_b64(S(46, 2), sP[2], sP[1])
    k.s_cmp_eq_u32(sT2, 2)
    k.s_cselect_b64(S(46, 2), sP[3], S(46, 2))
    srd(k, sA, S(46, 2), 576 * 8192)
    frags = [[(A(8 * i + 4 * t, 4) if i < 32 else V(224 + 8 * (i - 32) + 4 * t, 4)) for t in range(2)] for i in range(36)]
    sCol, sLB, sOUT = S(48), S(49), S(50)
    k.s_and_b32(sT0, sU, 15); k.s_lshl_b32(sCol, sT0, 9); k.s_lshl_b32(sT1, sW, 7); k.s_add_u32(sCol, sCol, sT1)
    k.s_lshl_b32(sLB, sW, 15)
    g32_weights(k, 2, sA, 8192, sCol, frags, sLB)
    k.s_and_b32(sT0, sU, 15)
    k.s_lshl_b32(sT0, sT0, 1); k.s_lshr_b32(sT1, sW, 1); k.s_add_u32(sT0, sT0, sT1); k.s_lshl_b32(sOUT, sT0, 13)
    k.s_mul_i32(sT1, sT2, KS - QS); k.s_add_u32(sOUT, sOUT, sT1); k.s_add_u32(sOUT, sOUT, QS)
    assert VT - KS == KS - QS
    vO, t, u, tok, hi = V(9), V(4), V(5), V(6), V(7)
    k.v_and_b32(tok, 31, vL); k.v_lshrrev_b32(hi, 5, vL)
    k.s_and_b32(sT3, sW, 1)
    lk, lv, lgo = k.newlabel("isk"), k.newlabel("isv"), k.newlabel("go")
    def pre_wait(d):
        if Flags.on and d == 0:
            wait_flags_cu(k, 'LN', 0, 64, 1, abort, (V(10), V(11)))
    def post(d):
        if Flags.on:
            k.s_max_u32(sT4, sSEG, -d); k.s_add_u32(sT4, sT4, d)
            set_flag(k, 'QKV', sU, sT4, (V(10), V(11)), w0=True)
    def mk_epi(tstride):
        def epi(acc):
            k.s_lshl_b32(sT0, sSEG, 18); k.s_add_u32(sT0, sT0, sOUT)
            for t_ in range(2):
                for i in range(8): k.v_cvt_pk_bf16_f32(acc[t_][i], acc[t_][2 * i], acc[t_][2 * i + 1])
                for kk in range(2):
                    k.buffer_store_dwordx4(acc[t_][4 * kk:4 * kk + 4], vO, sWS, sT0, mods=f"offen offset:{t_ * tstride + kk * 512} sc1")
        return epi
    k.s_cmp_eq_u32(sT2, 2); k.s_cbranch_scc1(lv)
    k.v_lshrrev_b32(t, 4, tok); k.v_lshlrev_b32(t, 12, t); k.v_and_b32(u, 15, tok); k.v_lshl_add_u32(vO, u, 4, t)
    k.s_cmp_eq_u32(sT2, 0); k.s_cbranch_scc1(lgo)
    k.v_bfe_u32(t, tok, 3, 1); k.v_lshlrev_b32(t, 12, t)
    k.v_and_b32(u, 7, tok); k.v_lshl_add_u32(vO, u, 4, t)
    k.v_lshrrev_b32(u, 4, tok); k.v_lshl_add_u32(vO, u, 7, vO)
    k.label(lgo)
    k.v_lshl_add_u32(vO, hi, 8, vO)
    k.s_lshl_b32(sT3, sT3, 11); k.v_add_u32(vO, sT3, vO)
    g32_loop(k, 2, frags, False, XN, mk_epi(1024), abort, pre_wait, post, 4)
    k.s_endpgm()
    k.label(lv)
    k.v_lshrrev_b32(t, 4, tok); k.v_lshlrev_b32(t, 10, t); k.v_and_b32(u, 15, tok); k.v_lshl_add_u32(vO, u, 4, t)
    k.v_lshl_add_u32(vO, hi, 8, vO)
    k.s_lshl_b32(sT3, sT3, 12); k.v_add_u32(vO, sT3, vO)
    g32_loop(k, 2, frags, True, XN, mk_epi(2048), abort, pre_wait, post, 4)
    k.s_endpgm()

def att(k, abort):
    sA_, sH_, sBLK, sOB = S(44), S(45), S(46), S(47)
    sC = S(48, 2); sHI32 = S(50, 2); sNINF = S(52); sONE = S(54, 2); sHLF = S(56, 2)
    MASK = [[[S(60 + 2 * (8 * 0 + 4 * jj + r), 2) for r in range(4)] for jj in range(2)],
            [[S(76 + 2 * (4 * jj + r), 2) for r in range(4)] for jj in range(2)]]
    k.s_lshl_b32(sA_, sU, 2); k.s_add_u32(sA_, sA_, sW)
    k.s_and_b32(sH_, sA_, 31); k.s_lshr_b32(sSEG, sA_, 5)
    k.s_mov_b32(sC[0], f32(SOFTC)); k.s_mov_b32(sC[1], f32(SOFTC))
    k.s_mov_b32(sONE[0], 0x3F803F80); k.s_mov_b32(sONE[1], 0x3F803F80)
    k.s_mov_b32(sHLF[0], 0x3F003F00); k.s_mov_b32(sHLF[1], 0x3F003F00)
    k.v_cmp_lt_u32(sHI32, 31, vL)
    g, n, kt, vL8, vNINF = V(4), V(5), V(6), V(7), V(8)
    k.v_lshrrev_b32(g, 4, vL); k.v_and_b32(n, 15, vL)
    k.v_lshrrev_b32(kt, 1, g); k.v_lshlrev_b32(kt, 4, kt); k.v_and_b32(g, 1, g); k.v_lshl_add_u32(kt, g, 2, kt)
    k.v_sub_u32(kt, kt, n)
    for qt in range(2):
        for jj in range(2):
            for r in range(4):
                k.v_cmp_lt_i32(MASK[qt][jj][r], 16 * qt - 8 * jj - r, kt)
    k.v_lshlrev_b32(vL8, 3, vL)
    k.v_mov_b32(vNINF, 0xFF800000)
    Q = [[V(16 + 16 * qt + 4 * ks, 4) for ks in range(4)] for qt in range(2)]
    Kx = [[V(48 + 16 * jj + 4 * ks, 4) for ks in range(4)] for jj in range(2)]
    Km = [V(80 + 4 * ks, 4) for ks in range(4)]
    Vx = [V(96 + 4 * et, 4) for et in range(8)]
    Vm = [V(128 + 2 * w, 2) for w in range(4)]
    Sx = [[V(136 + 12 * qt + 4 * j, 4) for j in range(3)] for qt in range(2)]
    O = [[V(160 + 32 * qt + 4 * et, 4) for et in range(8)] for qt in range(2)]
    L = [V(224 + 4 * qt, 4) for qt in range(2)]
    ones = V(232, 4); halves = V(236, 2)
    Bm = [[V(240 + 4 * qt + 2 * x, 2) for x in range(2)] for qt in range(2)]
    st = [V(248 + 4 * qt, 4) for qt in range(2)]
    k.v_mov_b64(ones[0:2], sONE); k.v_mov_b64(ones[2:4], sONE); k.v_mov_b64(halves, sHLF)
    MF = lambda d, a, b, c: I("v_mfma_f32_16x16x32_bf16", d, a, b, c)
    MF16 = lambda d, a, b, c: I("v_mfma_f32_16x16x16_bf16", d, a, b, c)
    wait_init(k, abort)
    top = k.label()
    k.s_lshl_b32(sBLK, sSEG, 5); k.s_add_u32(sBLK, sBLK, sH_)
    if Flags.on:
        k.s_add_u32(sT4, sSEG, 1)
        k.s_lshr_b32(sT3, sH_, 1)
        wait_flags(k, 'QKV', sT3, 3, sT4, abort, (V(10), V(11)), stride=16)
    k.s_lshl_b32(sT0, sBLK, 13)
    k.s_add_u32(sT1, sT0, QS); k.s_add_u32(sT2, sT0, QS + 4096)
    for qt in range(2):
        for ks in range(4): k.buffer_load_dwordx4(Q[qt][ks], vL16, sWS, sT2 if qt else sT1, mods=f"offen offset:{ks * 1024}")
    k.s_add_u32(sT1, sT0, KS); k.s_add_u32(sT2, sT0, KS + 4096)
    for jj in range(2):
        for ks in range(4): k.buffer_load_dwordx4(Kx[jj][ks], vL16, sWS, sT2 if jj else sT1, mods=f"offen offset:{ks * 1024}")
    k.s_add_u32(sT1, sT0, VT); k.s_add_u32(sT2, sT0, VT + 4096)
    for et in range(8): k.buffer_load_dwordx4(Vx[et], vL16, sWS, sT2 if et >= 4 else sT1, mods=f"offen offset:{(et % 4) * 1024}")
    k.s_add_u32(sOB, sT0, OS)
    o = []
    for qt in range(2):
        for jj in range(2):
            for ks in range(4): o.append(MF(Sx[qt][jj], Kx[jj][ks], Q[qt][ks], 0 if ks == 0 else Sx[qt][jj]))
            for r in range(4): o.append(I("v_cndmask_b32", Sx[qt][jj][r], Sx[qt][jj][r], vNINF, MASK[qt][jj][r]))
    k.extend(schedule(o))
    k.wait(vm=0)
    if Flags.on:
        k.s_add_u32(sT4, sSEG, 1)
        wait_flags(k, 'TEAM', sH_, 1, sT4, abort, (V(10), V(11)))
    k.s_lshl_b32(sT0, sBLK, 12); k.s_add_u32(sT0, sT0, KM)
    for ks in range(4): k.buffer_load_dwordx4(Km[ks], vL16, sWS, sT0, mods=f"offen offset:{ks * 1024}")
    k.s_lshl_b32(sT0, sBLK, 11); k.s_add_u32(sT0, sT0, VM)
    for w in range(4): k.buffer_load_dwordx2(Vm[w], vL8, sWS, sT0, mods=f"offen offset:{w * 512}")
    k.wait(vm=4)
    o = []
    E = o.extend; Ap = o.append
    for qt in range(2):
        s0, s1, sm = Sx[qt]
        for ks in range(4): Ap(MF(sm, Km[ks], Q[qt][ks], 0 if ks == 0 else sm))
        mx, tt, cm = st[qt][0], st[qt][1], st[qt][2:4]
        E([I("v_max3_f32", mx, s0[0], s0[1], s0[2]), I("v_max3_f32", tt, s0[3], s1[0], s1[1]),
           I("v_max3_f32", mx, mx, s1[2], s1[3]), I("v_max_f32", mx, mx, tt),
           I("v_mov_b32", tt, mx), I("v_permlane32_swap_b32", mx, tt),
           I("v_max3_f32", mx, mx, tt, sm[0]), I("v_max3_f32", tt, sm[1], sm[2], sm[3]), I("v_max_f32", mx, mx, tt),
           I("v_mov_b32", tt, mx), I("v_permlane16_swap_b32", mx, tt), I("v_max_f32", mx, mx, tt),
           I("v_mul_f32", cm[0], sC[0], mx)])
        for q in (s0, s1, sm):
            for hh in range(2):
                Ap(I("v_pk_fma_f32", q[2 * hh:2 * hh + 2], q[2 * hh:2 * hh + 2], sC, cm, mods="op_sel_hi:[1,1,0] neg_lo:[0,0,1] neg_hi:[0,0,1]"))
            for r in range(4): Ap(I("v_exp_f32", q[r], q[r]))
        E([I("v_cvt_pk_bf16_f32", s0[0], s0[0], s0[1]), I("v_cvt_pk_bf16_f32", s0[1], s0[2], s0[3]),
           I("v_cvt_pk_bf16_f32", s0[2], s1[0], s1[1]), I("v_cvt_pk_bf16_f32", s0[3], s1[2], s1[3]),
           I("v_cvt_pk_bf16_f32", sm[0], sm[0], sm[1]), I("v_cvt_pk_bf16_f32", sm[1], sm[2], sm[3])])
        for r in range(2):
            Ap(I("v_cndmask_b32", Bm[qt][0][r], sm[r], 0, sHI32)); Ap(I("v_cndmask_b32", Bm[qt][1][r], 0, sm[r], sHI32))
        Ap(MF(L[qt], ones, s0, 0)); Ap(MF16(L[qt], halves, sm[0:2], L[qt]))
        Ap(I("v_rcp_f32", L[qt][0], L[qt][0]))
    k.extend(schedule(o))
    k.wait(vm=0)
    o = []
    E = o.extend; Ap = o.append
    for qt in range(2):
        for et in range(8):
            Ap(MF(O[qt][et], Vx[et], Sx[qt][0], 0))
            Ap(MF16(O[qt][et], Vm[et // 2], Bm[qt][et % 2], O[qt][et]))
            for hh in range(2):
                Ap(I("v_pk_mul_f32", O[qt][et][2 * hh:2 * hh + 2], O[qt][et][2 * hh:2 * hh + 2], L[qt][0:2], mods="op_sel_hi:[1,0]"))
            d = O[qt][et & ~1]
            for hh in range(2):
                Ap(I("v_cvt_pk_bf16_f32", d[2 * (et % 2) + hh], O[qt][et][2 * hh], O[qt][et][2 * hh + 1]))
            if et % 2:
                if et == 1 and qt == 1: Ap(I("s_add_u32", sOB, sOB, 4096))
                Ap(I("buffer_store_dwordx4", d, vL16, sWS, sOB, mods=f"offen offset:{(et // 2) * 1024} sc1"))
    k.extend(schedule(o))
    if Flags.on:
        k.wait(vm=0)
        k.s_add_u32(sT4, sSEG, 1)
        set_flag(k, 'ATT', sA_, sT4, (V(10), V(11)))
    k.s_add_u32(sSEG, sSEG, 2)
    k.s_cmp_lt_u32(sSEG, 64)
    k.s_cbranch_scc1(top)
    k.s_endpgm()
att_spec = (16, att, [])

def sk(k, abort, NKG, rowmap, src, NB, dst, in_role, out_role):
    sAg, sBq, sKI, sLB, sCol = S(44), S(45), S(46), S(47), S(48)
    srd(k, sA, sP[1], NKG * 512 * 1152)
    k.s_lshr_b32(sAg, sU, 2); k.s_and_b32(sBq, sU, 3)
    k.s_lshl_b32(sKI, sAg, 2); k.s_add_u32(sKI, sKI, sW)
    k.s_lshl_b32(sLB, sW, 15)
    k.s_mul_i32(sCol, sKI, 128 * 1152); k.s_mul_i32(sT0, sBq, 288); k.s_add_u32(sCol, sCol, sT0)
    vD, vR, t, u, g, r4, c4, n = V(4), V(5), V(6), V(7), V(8), V(9), V(10), V(11)
    k.v_lshrrev_b32(g, 4, vL); k.v_bfe_u32(r4, vL, 2, 2); k.v_and_b32(c4, 3, vL); k.v_and_b32(n, 15, vL)
    k.v_lshrrev_b32(t, 2, vL); k.v_mul_u32_u24(vD, 1152, t); k.v_lshl_add_u32(vD, c4, 4, vD)
    if rowmap == 'o': k.v_lshl_add_u32(t, g, 2, r4)
    else:
        k.v_lshrrev_b32(t, 1, g); k.v_lshlrev_b32(t, 4, t); k.v_and_b32(u, 1, g); k.v_lshl_add_u32(t, u, 2, t); k.v_add_u32(t, t, r4)
    k.v_lshlrev_b32(t, 6, t); k.v_lshl_add_u32(vR, c4, 3, t); k.v_add_u32(vR, sLB, vR)
    Wf = [[A(16 * ct + 4 * ks, 4) for ks in range(4)] for ct in range(9)]
    imgs = [(P, hf) for P in range(5) for hf in range(2)]
    def dma(i):
        P, hf = imgs[i]
        k.s_add_u32(sT1, sCol, hf * 64 * 1152 + P * 64)
        for q in range(4):
            k.s_add_u32(M0, sLB, (i % 8) * 4096 + q * 1024)
            if q: k.s_add_u32(sT1, sT1, 16 * 1152)
            k.buffer_load_dwordx4(vD, sA, sT1, mods="offen lds")
    for i in range(8): dma(i)
    for i, (P, hf) in enumerate(imgs):
        k.wait(vm=4 * min(7, 9 - i))
        for c in range(2 if P < 4 else 1):
            for k2 in range(2):
                for jj in range(2):
                    off = (i % 8) * 4096 + (32 * k2 + (16 if rowmap == 'o' else 8) * jj) * 64 + c * 32
                    k.ds_read_b64_tr_b16(Wf[2 * P + c][2 * hf + k2][2 * jj:2 * jj + 2], vR, mods=f"offset:{off}")
        k.wait(lgkm=0)
        if i + 8 < 10: dma(i + 8)
    vWr = V(12)
    k.v_mul_u32_u24(vWr, 592, n); k.v_lshl_add_u32(vWr, g, 4, vWr); k.s_mul_i32(sT0, sW, 18944); k.v_add_u32(vWr, sT0, vWr)
    vRd = [V(16 + i) for i in range(5)]; vGo = [V(24 + i) for i in range(5)]
    k.s_mov_b32(sT0, 0x38E38E4)
    k.s_mov_b32(sT0, 119304648)
    k.s_mul_i32(sT1, sBq, 576)
    for i in range(5):
        k.v_add_u32(t, 256 * i, V(0))
        k.v_mul_hi_u32(u, t, sT0)
        k.v_mul_u32_u24(vD, 36, u); k.v_sub_u32(t, t, vD)
        k.v_mul_u32_u24(vRd[i], 592, u); k.v_lshl_add_u32(vRd[i], t, 4, vRd[i])
        k.v_mul_u32_u24(vGo[i], 2304, u); k.v_lshl_add_u32(vGo[i], t, 4, vGo[i]); k.v_add_u32(vGo[i], sT1, vGo[i])
    X = [[V(32 + 16 * qt + 4 * ks, 4) for ks in range(4)] for qt in range(2)]
    D = [[V(64 + 8 * ct + 4 * qt, 4) for qt in range(2)] for ct in range(9)]
    R = [[V(144 + 16 * i + 4 * w, 4) for w in range(4)] for i in range(5)]
    k.s_mov_b32(sSEG, 0)
    k.s_barrier()
    wait_init(k, abort)
    top = k.label()
    if Flags.on:
        k.s_add_u32(sT4, sSEG, 1)
        k.s_and_b32(sT3, sSEG, 1); k.s_mul_i32(sT3, sT3, NB); k.s_add_u32(sT3, sT3, sKI)
        wait_flags_cu(k, in_role, sT3, 4, sT4, abort, (V(4), V(5)))
    k.s_mul_i32(sT0, sSEG, NB); k.s_add_u32(sT0, sT0, sKI); k.s_lshl_b32(sT0, sT0, 13)
    k.s_add_u32(sT1, sT0, src); k.s_add_u32(sT2, sT0, src + 4096)
    for ks in range(4):
        for qt in range(2): k.buffer_load_dwordx4(X[qt][ks], vL16, sWS, sT2 if qt else sT1, mods=f"offen offset:{ks * 1024}")
    o = []
    for ks in range(4):
        for ct in range(9):
            for qt in range(2):
                o.append(I("v_mfma_f32_16x16x32_bf16", D[ct][qt], Wf[ct][ks], X[qt][ks], 0 if ks == 0 else D[ct][qt]))
                if ks == 3: o.append(dep(I("ds_write_b128", vWr, D[ct][qt], mods=f"offset:{qt * 9472 + ct * 64}"), defs=["W%d%d" % (ct, qt)]))
    n_ = 0
    for ins in o:
        if ins.cls == "mfma":
            dep(ins, defs=["o:c%d" % (n_ + 1)], uses=["o:c%d" % n_]); n_ += 1
    k.extend(schedule(o))
    k.wait(lgkm=0)
    k.s_barrier()
    k.s_mul_i32(sT0, sSEG, NKG); k.s_add_u32(sT0, sT0, sAg); k.s_mul_i32(sT0, sT0, 73728); k.s_add_u32(sT0, sT0, dst)
    def part(i):
        o = []
        for w in range(4): o.append(I("ds_read_b128", R[i][w], vRd[i], mods=f"offset:{w * 18944}"))
        for (a_, b_) in ((0, 1), (2, 3), (0, 2)):
            for hh in range(2): o.append(I("v_pk_add_f32", R[i][a_][2 * hh:2 * hh + 2], R[i][a_][2 * hh:2 * hh + 2], R[i][b_][2 * hh:2 * hh + 2]))
        o.append(I("buffer_store_dwordx4", R[i][0], vGo[i], sWS, sT0, mods="offen sc1"))
        return o
    k.extend(schedule(sum((part(i) for i in range(4)), [])))
    skip = k.newlabel("skip")
    k.s_cmp_ge_u32(sW, 2)
    k.s_cbranch_scc1(skip)
    k.extend(part(4))
    k.label(skip)
    k.wait(vm=0)
    k.s_barrier()
    k.s_add_u32(sSEG, sSEG, 1)
    set_flag(k, out_role, sU, sSEG, (V(4), V(5)), w0=True)
    k.s_cmp_lt_u32(sSEG, 64)
    k.s_cbranch_scc1(top)
    k.s_endpgm()
def op(k, abort): sk(k, abort, 8, 'o', OS, 32, P1, 'ATT', 'OP')
def f2(k, abort): sk(k, abort, 9, 'g', GG, 36, P2, 'F1', 'F2')
op_spec = (32, op, ['Wo'])
f2_spec = (36, f2, ['w2'])

def wave_sum(k, x, t):
    row_reduce8(k, x, t)
    k.v_add_f32_dpp(x, x, x, mods="row_mirror row_mask:0xf bank_mask:0xf")
    k.v_mov_b32(t, x); k.v_permlane16_swap_b32(x, t); k.v_add_f32(x, x, t)
    k.v_mov_b32(t, x); k.v_permlane32_swap_b32(x, t); k.v_add_f32(x, x, t)

def red(k, abort, second):
    NKG = 9 if second else 8
    sTok, sLIVE = S(44), S(46, 2)
    k.s_lshl_b32(sTok, sU, 2); k.s_add_u32(sTok, sTok, sW)
    k.v_cmp_gt_u32(sLIVE, 48, vL)
    vQ16, vQ8, vHN, t, u = V(4), V(5), V(6), V(7), V(8)
    vOOB = V(9)
    k.v_mov_b32(vOOB, 0x80000000)
    k.v_cndmask_b32(vQ16, vOOB, vL16, sLIVE)
    k.v_lshrrev_b32(t, 1, vL16); k.v_cndmask_b32(vQ8, vOOB, t, sLIVE)
    Pp = [[V(32 + 12 * a + 4 * i, 4) for i in range(3)] for a in range(NKG)]
    Hh = [V(144 + 4 * i, 4) for i in range(3)]
    Bz = [V(160 + 4 * i, 4) for i in range(3)]
    xr = [V(176 + 2 * i, 2) for i in range(3)]
    if second:
        srd(k, sA, sP[1], 1152); srd(k, sB, sP[2], 2048 * 1152)
        for i in range(3): k.buffer_load_dwordx2(xr[i], vQ8, sA, 0, mods=f"offen offset:{384 * i}")
        for i in range(3):
            for hh in range(2):
                k.v_lshlrev_b32(Bz[i][2 * hh], 16, xr[i][hh]); k.v_and_b32(Bz[i][2 * hh + 1], 0xffff0000, xr[i][hh])
    else:
        srd(k, sA, sP[1], 2048 * 1152)
        k.v_lshrrev_b32(t, 2, vL); k.v_lshlrev_b32(t, 10, t); k.v_bfe_u32(u, vL, 1, 1); k.v_lshl_add_u32(t, u, 9, t)
        k.v_and_b32(u, 1, vL); k.v_lshl_add_u32(t, u, 3, t); k.s_lshl_b32(sT0, sTok, 4); k.v_add_u32(t, sT0, t)
        k.v_cndmask_b32(vHN, vOOB, t, sLIVE)
    k.s_mov_b32(sSEG, 0)
    wait_init(k, abort)
    top = k.label()
    k.s_lshl_b32(sT2, sSEG, 5); k.s_add_u32(sT2, sT2, sTok)
    if not second:
        k.s_mul_i32(sT3, sT2, 1152)
        for i in range(3): k.buffer_load_dwordx2(xr[i], vQ8, sA, sT3, mods=f"offen offset:{384 * i}")
        k.wait(vm=0)
    if Flags.on:
        k.s_add_u32(sT4, sSEG, 1)
        wait_flags_cu(k, 'F2' if second else 'OP', 0, NKG * 4, sT4, abort, (V(10), V(11)))
    k.s_mul_i32(sT0, sSEG, NKG * 73728); k.s_mul_i32(sT1, sTok, 2304); k.s_add_u32(sT0, sT0, sT1); k.s_add_u32(sT0, sT0, P2 if second else P1)
    k.s_mul_i32(sT1, sT2, 2304); k.s_add_u32(sT1, sT1, HH)
    if second:
        for i in range(3): k.buffer_load_dwordx4(Hh[i], vQ16, sWS, sT1, mods=f"offen offset:{768 * i}")
    for a in range(NKG):
        for i in range(3): k.buffer_load_dwordx4(Pp[a][i], vQ16, sWS, sT0, mods=f"offen offset:{768 * i}")
        if a < NKG - 1: k.s_add_u32(sT0, sT0, 73728)
    if second:
        for i in range(3):
            for hh in range(2): k.v_pk_add_f32(Hh[i][2 * hh:2 * hh + 2], Hh[i][2 * hh:2 * hh + 2], Bz[i][2 * hh:2 * hh + 2])
    else:
        for i in range(3):
            for hh in range(2):
                k.v_lshlrev_b32(Hh[i][2 * hh], 16, xr[i][hh]); k.v_and_b32(Hh[i][2 * hh + 1], 0xffff0000, xr[i][hh])
    for a in range(NKG):
        for i in range(3):
            for hh in range(2): k.v_pk_add_f32(Hh[i][2 * hh:2 * hh + 2], Hh[i][2 * hh:2 * hh + 2], Pp[a][i][2 * hh:2 * hh + 2])
    if second:
        k.s_mul_i32(sT3, sT2, 1152)
        for i in range(3):
            for hh in range(2): k.v_cvt_pk_bf16_f32(xr[i][hh], Hh[i][2 * hh], Hh[i][2 * hh + 1])
            k.buffer_store_dwordx2(xr[i], vQ8, sB, sT3, mods=f"offen offset:{384 * i}")
    else:
        for i in range(3): k.buffer_store_dwordx4(Hh[i], vQ16, sWS, sT1, mods=f"offen offset:{768 * i} sc1")
        s2, m_, q2 = V(12, 2), V(14), V(16, 2)
        C = [V(184 + 4 * i, 4) for i in range(3)]
        k.v_pk_add_f32(s2, Hh[0][0:2], Hh[0][2:4])
        for i in range(1, 3):
            for hh in range(2): k.v_pk_add_f32(s2, s2, Hh[i][2 * hh:2 * hh + 2])
        k.v_add_f32(s2[0], s2[0], s2[1]); wave_sum(k, s2[0], t)
        k.v_mul_f32(m_, f32(1 / 576), s2[0])
        k.v_cndmask_b32(V(14), 0, m_, sLIVE)
        k.v_mov_b64(q2, 0)
        for i in range(3):
            for hh in range(2):
                k.v_pk_add_f32(C[i][2 * hh:2 * hh + 2], Hh[i][2 * hh:2 * hh + 2], V(14, 2), mods="op_sel_hi:[1,0] neg_lo:[0,1] neg_hi:[0,1]")
                k.v_pk_fma_f32(q2, C[i][2 * hh:2 * hh + 2], C[i][2 * hh:2 * hh + 2], q2)
        k.v_add_f32(q2[0], q2[0], q2[1]); wave_sum(k, q2[0], t)
        k.v_mov_b32(V(14), f32(1e-5)); k.v_fmac_f32(V(14), f32(1 / 576), q2[0]); k.v_rsq_f32(V(14), V(14))
        k.s_mul_i32(sT3, sSEG, 36864); k.s_add_u32(sT3, sT3, HN)
        for i in range(3):
            for hh in range(2):
                k.v_pk_mul_f32(C[i][2 * hh:2 * hh + 2], C[i][2 * hh:2 * hh + 2], V(14, 2), mods="op_sel_hi:[1,0]")
                k.v_cvt_pk_bf16_f32(xr[i][hh], C[i][2 * hh], C[i][2 * hh + 1])
            k.buffer_store_dwordx2(xr[i], vHN, sWS, sT3, mods="offen sc1")
            if i < 2: k.s_add_u32(sT3, sT3, 12288)
    k.s_add_u32(sSEG, sSEG, 1)
    k.wait(vm=0)
    if not second: set_flag(k, 'R1', sTok, sSEG, (V(10), V(11)))
    else: trace(k, 8, sTok, sSEG, (V(10), V(11)))
    k.s_cmp_lt_u32(sSEG, 64)
    k.s_cbranch_scc1(top)
    k.s_endpgm()
def red1(k, abort): red(k, abort, False)
def red2(k, abort): red(k, abort, True)
red1_spec = (8, red1, ['x'])
red2_spec = (8, red2, ['b2', 'out'])

def f1(k, abort):
    sF, sCol, sLB, sM = S(44), S(45), S(46), S(47)
    sC0, sC1, sOne = S(48, 2), S(50, 2), S(52, 2)
    srd(k, sA, sP[1], 576 * 9216); srd(k, sB, sP[2], 9216)
    k.s_cmp_ge_u32(sU, 36)
    k.s_cselect_b32(sSEG, 1, 0)
    k.s_mul_i32(sT0, sSEG, 36); k.s_sub_u32(sF, sU, sT0)
    k.s_lshl_b32(sCol, sF, 8); k.s_lshl_b32(sT1, sW, 6); k.s_add_u32(sCol, sCol, sT1)
    k.s_lshl_b32(sLB, sW, 15)
    frags = [[A(4 * i, 4)] for i in range(36)]
    bias = V(96, 16); braw = V(112, 8)
    vB, vO, t, u = V(9), V(10), V(4), V(5)
    k.v_lshrrev_b32(vB, 5, vL); k.v_lshlrev_b32(vB, 3, vB)
    for j in range(4): k.buffer_load_dwordx2(braw[2 * j:2 * j + 2], vB, sB, sCol, mods=f"offen offset:{16 * j}")
    for i in range(8):
        k.v_lshlrev_b32(bias[2 * i], 16, braw[i]); k.v_and_b32(bias[2 * i + 1], 0xffff0000, braw[i])
    g32_weights(k, 1, sA, 9216, sCol, frags, sLB)
    c0 = -2 * 1.4426950408889634 * 0.7978845608028654
    for i in range(2):
        k.s_mov_b32(sC0[i], f32(c0)); k.s_mov_b32(sC1[i], f32(c0 * 0.044715)); k.s_mov_b32(sOne[i], f32(1.0))
    vC0 = V(120, 2)
    k.v_mov_b64(vC0, sC0)
    k.v_bfe_u32(t, vL, 4, 1); k.v_lshlrev_b32(t, 12, t); k.v_and_b32(u, 15, vL); k.v_lshl_add_u32(vO, u, 4, t)
    k.v_lshrrev_b32(t, 5, vL); k.v_lshl_add_u32(vO, t, 8, vO); k.s_lshl_b32(sT0, sW, 10); k.v_add_u32(vO, sT0, vO)
    k.s_mul_i32(sM, sW, 9216)
    acc = [V(16, 16)]; xb = [V(64 + 4 * i, 4) for i in range(6)]; z = V(32, 16)
    k.s_barrier()
    wait_init(k, abort)
    top = k.label()
    if Flags.on:
        k.s_add_u32(sT4, sSEG, 1)
        wait_flags_cu(k, 'R1', 0, 32, sT4, abort, (V(4), V(5)))
    k.s_mul_i32(sT0, sSEG, 36864); k.s_add_u32(sT0, sT0, sM); k.s_add_u32(sT0, sT0, HN)
    for q in range(9):
        k.s_add_u32(M0, sM, q * 1024)
        if q: k.s_add_u32(sT0, sT0, 1024)
        k.buffer_load_dwordx4(vL16, sWS, sT0, mods="offen lds")
    k.wait(vm=0)
    k.s_barrier()
    g32_kloop(k, 1, frags, False, acc, xb, vL16)
    a = acc[0]
    o = []
    for i in range(8):
        x, zz = a[2 * i:2 * i + 2], z[2 * i:2 * i + 2]
        o += [I("v_pk_add_f32", x, x, bias[2 * i:2 * i + 2]), I("v_pk_mul_f32", zz, x, x), I("v_pk_fma_f32", zz, zz, sC1, vC0),
              I("v_pk_mul_f32", zz, zz, x), I("v_exp_f32", zz[0], zz[0]), I("v_exp_f32", zz[1], zz[1]),
              I("v_pk_add_f32", zz, zz, sOne), I("v_rcp_f32", zz[0], zz[0]), I("v_rcp_f32", zz[1], zz[1]),
              I("v_pk_mul_f32", x, x, zz), I("v_cvt_pk_bf16_f32", z[i] if False else V(48 + i), x[0], x[1])]
    k.s_mul_i32(sT0, sSEG, 36); k.s_add_u32(sT0, sT0, sF); k.s_lshl_b32(sT0, sT0, 13); k.s_add_u32(sT0, sT0, GG)
    for kk in range(2): o.append(I("buffer_store_dwordx4", V(48 + 4 * kk, 4), vO, sWS, sT0, mods=f"offen offset:{kk * 512} sc1"))
    k.extend(schedule(o))
    k.wait(vm=0)
    k.s_barrier()
    if Flags.on:
        k.s_add_u32(sT4, sSEG, 1)
        set_flag(k, 'F1', sU, sT4, (V(4), V(5)), w0=True)
    k.s_add_u32(sSEG, sSEG, 2)
    k.s_cmp_lt_u32(sSEG, 64)
    k.s_cbranch_scc1(top)
    k.s_endpgm()
f1_spec = (72, f1, ['w1', 'b1'])
```

```python
import sys, os
sys.path.insert(0, os.path.dirname(__file__))
from asmlib import *
from layout import *
import build, team, workers as wk
wk.Flags.on = True
team.FLAGS_ON = True
team.RPACE = 1
NAME = build.NAME + "_kernel"
RANGES = [("qkv", 48, wk.qkv, ['Wq', 'Wk', 'Wv']), ("att", 16, wk.att, []), ("op", 32, wk.op, ['Wo']), ("red1", 8, wk.red1, ['x']),
          ("f1", 72, wk.f1, ['w1', 'b1', 'x']), ("f2", 36, wk.f2, ['w2']), ("red2", 8, wk.red2, ['b2', 'out']), ("init", 1, wk.init_flags, [])]
def mega():
    k = K("m")
    ex = k.newlabel("exit")
    lteam = k.newlabel("team")
    k.s_cmp_ge_u32(S(2), 256)
    k.s_cbranch_scc1(ex)
    k.s_and_b32(S(3), S(2), 7)
    k.s_cmp_eq_u32(S(3), 0)
    k.s_cbranch_scc0(lw := k.newlabel("workers"))
    team.team_body(k)
    k.label(ex)
    k.s_endpgm()
    k.label(lw)
    k.s_lshr_b32(wk.sU, S(2), 3); k.s_mul_i32(wk.sU, wk.sU, 7); k.s_add_u32(wk.sU, wk.sU, S(3)); k.s_sub_u32(wk.sU, wk.sU, 1)
    for nm, n, fn, ptrs in RANGES:
        nxt = k.newlabel("n" + nm)
        ab = k.newlabel("ab" + nm)
        k.s_cmp_ge_u32(wk.sU, n)
        k.s_cbranch_scc1(nxt)
        wk.common(k, ptrs)
        if nm == "f1":
            no = k.newlabel("noln")
            k.s_cmp_ge_u32(wk.sU, 64)
            k.s_cbranch_scc1(no)
            sv = wk.sP[1]
            k.s_mov_b64(wk.sP[4], wk.sP[1]); k.s_mov_b64(wk.sP[1], wk.sP[3])
            wk.ln1(k, ab)
            k.s_mov_b64(wk.sP[1], wk.sP[4])
            k.label(no)
        fn(k, ab)
        k.label(ab)
        k.s_endpgm()
        k.label(nxt)
        k.s_sub_u32(wk.sU, wk.sU, n)
    k.s_endpgm()
    return k.finish()
if __name__ == "__main__":
    if len(sys.argv) > 2 and "light" in sys.argv[2]: team.LIGHT = True
    import re
    if len(sys.argv) > 2 and "trace" in sys.argv[2]: wk.TRACE_ON = True; team.RTRACE = True
    mm = re.search(r"sl(\d+)", sys.argv[2]) if len(sys.argv) > 2 else None
    if mm: wk.SLEEP = int(mm.group(1))
    build.assemble([(NAME, 256, 256, 163840)], [(NAME, mega(), 512, 256)], sys.argv[1])
```
